```python
import torch

def _softmax(x, axis=-1):
    return torch.softmax(x, dim=axis)
def _gelu(x):
    return torch.nn.functional.gelu(x, approximate="tanh")
def _silu(x):
    return torch.nn.functional.silu(x)
def _sigmoid(x):
    return torch.sigmoid(x)
def _layernorm(x, axis=-1, eps=1e-5):
    m = x.mean(dim=axis, keepdim=True)
    v = x.var(dim=axis, keepdim=True, unbiased=False)
    return (x - m) / torch.sqrt(v + eps)
def _scatter_add(tgt, idx, src, axis=0):
    return tgt.clone().index_add_(axis, idx, src)
def _segment_sum(src, seg, n):
    out = torch.zeros((n,) + src.shape[1:], dtype=src.dtype)
    return out.index_add_(0, seg, src)
def _pad(x, pw):
    flat = tuple(v for pair in reversed(pw) for v in pair)
    return torch.nn.functional.pad(x, flat)

kernel_name = 'sequential_preLN__linear_kernel_hedgehog__geglu_ffn__prompt'

def setup_inputs():

    _w = (lambda a: (lambda t: t.to(torch.bfloat16) if t.is_floating_point() else t)(torch.as_tensor(a)))
    def _A_setup():
        B, S, D, H = 1, 2048, 640, 32
        Dh = D // H
        return {
            "x": _w((lambda *s: torch.randn(*s, dtype=torch.bfloat16) * 0.05)(B, S, D)),
            "wqkv": _w((lambda *s: torch.randn(*s, dtype=torch.bfloat16) * 0.2)(D, 3 * D)),
            "w_phi": _w((lambda *s: torch.randn(*s, dtype=torch.bfloat16) * 0.2)(H, Dh, Dh) * (Dh ** -0.5)),
            "wo": _w((lambda *s: torch.randn(*s, dtype=torch.bfloat16) * 0.05)(D, D)),
        }
    _A_in = _A_setup()

    def _B_setup():
        B, S, D, F = 1, 2048, 640, 1536
        return {
            "x": _w((lambda *s: torch.randn(*s, dtype=torch.bfloat16) * 0.05)(B, S, D)),
            "w_gate": _w((lambda *s: torch.randn(*s, dtype=torch.bfloat16) * 0.05)(D, F)),
            "w_up": _w((lambda *s: torch.randn(*s, dtype=torch.bfloat16) * 0.05)(D, F)),
            "w_down": _w((lambda *s: torch.randn(*s, dtype=torch.bfloat16) * 0.05)(F, D)),
        }
    _B_in = _B_setup()

    return {
        "A_x": _A_in["x"],
        "A_wqkv": _A_in["wqkv"],
        "A_w_phi": _A_in["w_phi"],
        "A_wo": _A_in["wo"],
        "B_x": _B_in["x"],
        "B_w_gate": _B_in["w_gate"],
        "B_w_up": _B_in["w_up"],
        "B_w_down": _B_in["w_down"],
    }

def reference(A_x, A_wqkv, A_w_phi, A_wo, B_x, B_w_gate, B_w_up, B_w_down):
    def _A_ref(x, wqkv, w_phi, wo):
        B, S, D = x.shape
        H = 32; Dh = D // H
        qkv = (lambda x, *d: x.permute(*d))((x @ wqkv).reshape(B, S, 3, H, Dh), 2, 0, 3, 1, 4)
        q, k, v = qkv[0], qkv[1], qkv[2]
        pq = torch.einsum("bhsd,hdf->bhsf", q, w_phi)
        pk = torch.einsum("bhsd,hdf->bhsf", k, w_phi)
        phi_q = torch.concatenate([_softmax(pq, axis=-1), _softmax(-pq, axis=-1)], axis=-1)
        phi_k = torch.concatenate([_softmax(pk, axis=-1), _softmax(-pk, axis=-1)], axis=-1)
        kv = torch.einsum("bhsf,bhsd->bhfd", phi_k, v)
        z  = torch.einsum("bhsf->bhf", phi_k)
        num = torch.einsum("bhqf,bhfd->bhqd", phi_q, kv)
        den = torch.einsum("bhqf,bhf->bhq", phi_q, z)[..., None] + 1e-6
        o = num / den
        return (lambda x, *d: x.permute(*d))(o, 0, 2, 1, 3).reshape(B, S, D) @ wo

    def _B_ref(x, w_gate, w_up, w_down):
        return (_gelu(x @ w_gate) * (x @ w_up)) @ w_down

    x = A_x
    h = x + _A_ref(_layernorm(x, axis=-1), A_wqkv, A_w_phi, A_wo)
    h2 = h + _B_ref(_layernorm(h, axis=-1), B_w_gate, B_w_up, B_w_down)
    return h2
```

```python
import re

REG_RE = re.compile(r'^(v|a|s)(\d+)$')
RNG_RE = re.compile(r'^(v|a|s)\[(\d+):(\d+)\]$')

def split_ops(s):
    out, depth, cur = [], 0, ""
    for ch in s:
        if ch == '[': depth += 1
        if ch == ']': depth -= 1
        if ch == ',' and depth == 0:
            out.append(cur.strip()); cur = ""
        else:
            cur += ch
    if cur.strip(): out.append(cur.strip())
    return out

def regs_of(tok):
    tok = tok.strip()
    tok = tok.split(' ')[0] if not tok.startswith('abs(') else tok
    t = tok
    if t.startswith('-'): t = t[1:]
    if t.startswith('abs(') and t.endswith(')'): t = t[4:-1]
    if t.startswith('|') and t.endswith('|'): t = t[1:-1]
    m = REG_RE.match(t)
    if m: return [(m.group(1), int(m.group(2)))]
    m = RNG_RE.match(t)
    if m: return [(m.group(1), i) for i in range(int(m.group(2)), int(m.group(3)) + 1)]
    if t == 'vcc': return [('s', 'vcc_lo'), ('s', 'vcc_hi')]
    if t in ('vcc_lo', 'vcc_hi', 'm0', 'exec_lo', 'exec_hi'): return [('s', t)]
    if t == 'exec': return [('s', 'exec_lo'), ('s', 'exec_hi')]
    return []

TRANS = ('v_exp_f32', 'v_log_f32', 'v_rcp_f32', 'v_rsq_f32', 'v_sqrt_f32', 'v_sin_f32', 'v_cos_f32', 'v_rcp_iflag_f32')

class Ins:
    __slots__ = ('text', 'op', 'dst', 'src', 'kind', 'passes', 'srcC', 'srcAB', 'tag', 'wide_store', 'is_lds_dma')
    def __init__(self, text):
        self.text = text
        body = text.split(';')[0].strip()
        self.tag = None
        m = re.search(r';\s*@(\S+)', text)
        if m: self.tag = m.group(1)
        parts = body.split(None, 1)
        self.op = parts[0] if parts else ''
        base = re.sub(r'_(e32|e64|dpp|sdwa)$', '', self.op)
        ops = split_ops(parts[1]) if len(parts) > 1 else []
        R = [regs_of(o) for o in ops]
        self.dst, self.src, self.kind = [], [], 'other'
        self.passes = 0; self.srcC = []; self.srcAB = []; self.wide_store = False; self.is_lds_dma = False
        flat = lambda L: [r for x in L for r in x]
        if base.startswith('v_mfma'):
            self.kind = 'mfma'
            self.dst = R[0]; self.srcAB = R[1] + R[2]; self.srcC = R[3]; self.src = self.srcAB + self.srcC
            self.passes = 8 if '32x32' in base else 4
        elif base.startswith('ds_'):
            self.kind = 'ds'
            if base.startswith('ds_read') or base.startswith('ds_bpermute') or base.startswith('ds_swizzle'):
                self.dst = R[0]; self.src = flat(R[1:])
            else:
                self.src = flat(R)
        elif base.startswith('buffer_') or base.startswith('global_'):
            self.kind = 'vmem'
            toks = body.split()
            if base in ('buffer_wbl2', 'buffer_inv'):
                pass
            elif 'lds' in toks[1:] or '_lds_' in base:
                self.is_lds_dma = True
                self.src = flat(R) + [('s', 'm0')]
            elif '_load_' in base:
                self.dst = R[0]; self.src = flat(R[1:])
            elif '_atomic_' in base:
                self.src = flat(R)
                if 'sc0' in toks: self.dst = R[0]
            else:
                self.src = flat(R)
                self.wide_store = base.endswith('x3') or base.endswith('x4')
        elif base.startswith('v_'):
            self.kind = 'valu'
            if base.startswith('v_permlane') and 'swap' in base:
                self.dst = R[0] + R[1]; self.src = R[0] + R[1]
            elif base.startswith('v_cmp'):
                self.dst = R[0]; self.src = flat(R[1:])
            elif base in ('v_add_co_u32', 'v_sub_co_u32', 'v_addc_co_u32', 'v_subb_co_u32'):
                self.dst = R[0] + R[1]; self.src = flat(R[2:])
            elif base == 'v_nop':
                pass
            else:
                self.dst = R[0]; self.src = flat(R[1:])
                if base in ('v_fmac_f32', 'v_dot2c_f32_bf16', 'v_pk_fmac_f16', 'v_writelane_b32'):
                    self.src = self.src + R[0]
                if base == 'v_cndmask_b32' and len(ops) == 3:
                    self.src = self.src + regs_of('vcc')
        elif base.startswith('s_'):
            self.kind = 'salu'
            if base.startswith('s_load') or base.startswith('s_memtime') or base.startswith('s_memrealtime') or base.startswith('s_buffer_load'):
                self.kind = 'smem'; self.dst = R[0]; self.src = flat(R[1:])
            elif base.startswith('s_cmp') or base.startswith('s_bitcmp') or base in ('s_waitcnt', 's_barrier', 's_nop', 's_sleep', 's_endpgm', 's_setprio', 's_branch') or base.startswith('s_cbranch'):
                self.src = flat(R)
            elif 'saveexec' in base:
                self.dst = R[0] + regs_of('exec'); self.src = flat(R[1:]) + regs_of('exec')
            else:
                self.dst = R[0] if R else []; self.src = flat(R[1:])
        self.op = base

def states(ins):
    if ins.op == 's_nop':
        return int(ins.text.split(';')[0].split()[1], 0) + 1
    return 1

def required(p, c):
    need = 0
    pd = set(p.dst); cs = set(c.src); cd = set(c.dst)
    if p.kind == 'valu':
        vd = {r for r in pd if r[0] in 'va'}
        sd = {r for r in pd if r[0] == 's'}
        if c.kind == 'mfma' and vd & cs: need = max(need, 2)
        if c.kind == 'valu':
            if p.op in TRANS and c.op not in TRANS and vd & (cs | cd): need = max(need, 1)
            if p.op in TRANS and c.op in TRANS and vd & cs: need = max(need, 1)
            if c.op in ('v_readfirstlane_b32', 'v_readlane_b32') and vd & cs: need = max(need, 1)
            if c.op.startswith('v_permlane') and vd & cs: need = max(need, 2)
            if ('dpp' in c.text.split(';')[0] or 'row_' in c.text.split(';')[0]) and vd & cs: need = max(need, 2)
            if sd & cs: need = max(need, 4 if c.op in ('v_readlane_b32', 'v_writelane_b32') else 2)
            if p.op.startswith('v_dot2'):
                if vd & (cs | cd):
                    if c.op == p.op:
                        ops = split_ops(c.text.split(';')[0].split(None, 1)[1])
                        ab = set(regs_of(ops[1]) + regs_of(ops[2]))
                        if vd & ab: need = max(need, 3)
                    else: need = max(need, 3)
            if ('sdwa' in p.text or 'op_sel:' in p.text.split(';')[0] and not p.op.startswith('v_pk')) and vd & (cs | cd): need = max(need, 1)
        if p.op.startswith('v_dot2') and c.kind in ('vmem', 'ds', 'mfma') and vd & cs: need = max(need, 3)
        if p.op in TRANS and c.kind in ('vmem', 'ds', 'mfma') and vd & cs: need = max(need, 2 if c.kind == 'mfma' else 1)
        if c.kind == 'vmem' and sd & cs: need = max(need, 5)
        if c.kind == 'salu' and sd & cs and not c.op.startswith('s_cbranch'): need = max(need, 1)
        if sd & set(regs_of('exec')):
            if c.kind == 'mfma': need = max(need, 4)
    if p.kind == 'mfma':
        big = 12 if p.passes == 8 else 8
        ovl = 10 if p.passes == 8 else 6
        war = 7 if p.passes == 8 else 3
        if c.kind == 'mfma':
            if pd & set(c.srcAB): need = max(need, big)
            if pd & set(c.srcC):
                if not (c.srcC == p.dst and c.passes == p.passes): need = max(need, ovl)
            elif pd & cd: need = max(need, ovl)
        elif c.kind in ('valu', 'vmem', 'ds'):
            if pd & (cs | cd): need = max(need, big)
            if c.kind == 'valu' and set(p.srcC) & cd: need = max(need, war)
    if p.kind == 'salu':
        if ('s', 'm0') in pd and c.is_lds_dma: need = max(need, 1)
    if p.kind == 'vmem' and p.wide_store:
        ops = split_ops(p.text.split(';')[0].split(None, 1)[1])
        data = set(regs_of(ops[0])) if p.op.startswith('buffer') else set(regs_of(ops[1]))
        if data & cd: need = max(need, 2 if c.kind == 'valu' else 1)
    return need

class KGen:
    def __init__(self):
        self.L = []
        self._uid = 0
    def __call__(self, s):
        for l in s.split("\n"):
            l = l.strip()
            if l: self.L.append(l)
    def uid(self, p="L"):
        self._uid += 1
        return f"{p}_{self._uid}"
    def mark(self): return len(self.L)
    def cut(self, start):
        x = self.L[start:]; del self.L[start:]; return x

def is_label(l): return re.match(r'^[\w.$]+:\s*$', l.split(';')[0].strip()) is not None
def is_directive(l): return l.startswith('.')

def resolve_waits(L):
    out = []
    vm, lg = [], []
    cond = 0
    seen_vm, seen_lg = set(), set()
    smem = False
    for l in L:
        if l.startswith('@cond{'): cond += 1; continue
        if l.startswith('@cond}'): cond -= 1; continue
        if l.startswith('@waitvm') or l.startswith('@waitlg') or l.startswith('@waitboth'):
            toks = l.split()
            w = []
            spec = {}
            if toks[0] == '@waitvm': spec['vm'] = toks[1]
            elif toks[0] == '@waitlg': spec['lg'] = toks[1]
            else: spec['vm'] = toks[1]; spec['lg'] = toks[2]
            for kind, tag in spec.items():
                lst = vm if kind == 'vm' else lg
                seen = seen_vm if kind == 'vm' else seen_lg
                assert tag in seen, f"wait on unknown tag {tag}"
                idx = max([i for i, t in enumerate(lst) if t == tag], default=-1)
                if idx < 0: continue
                n = len(lst) - 1 - idx
                mx = 63 if kind == 'vm' else 15
                if kind == 'lg' and smem: n = 0
                n = min(n, mx)
                w.append(f"{'vmcnt' if kind == 'vm' else 'lgkmcnt'}({n})")
                if not cond:
                    del lst[:len(lst) - n]
                    if kind == 'lg' and n == 0: smem = False
            if w: out.append("s_waitcnt " + " ".join(w))
            continue
        out.append(l)
        if is_label(l) or is_directive(l) or l.startswith(';'): continue
        i = Ins(l)
        if cond: continue
        if i.kind == 'vmem':
            vm.append(i.tag); seen_vm.add(i.tag)
        elif i.kind == 'ds':
            lg.append(i.tag); seen_lg.add(i.tag)
        elif i.kind == 'smem':
            smem = True
        elif i.op == 's_waitcnt':
            m = re.search(r'vmcnt\((\d+)\)', l)
            if m: n = int(m.group(1)); del vm[:max(0, len(vm) - n)]
            m = re.search(r'lgkmcnt\((\d+)\)', l)
            if m:
                n = int(m.group(1)); del lg[:max(0, len(lg) - n)]
                if n == 0: smem = False
    return out

def insert_nops(L, window=24):
    out = []
    hist = []
    nn = 0
    for l in L:
        if is_label(l) or is_directive(l) or l.startswith(';'):
            out.append(l); continue
        c = Ins(l)
        dist = 0; need = 0
        for p in reversed(hist[-window:]):
            r = required(p, c)
            if r > dist: need = max(need, r - dist)
            dist += states(p)
            if dist >= 20: break
        while need > 0:
            k = min(need, 16)
            t = f"s_nop {k-1}"
            out.append(t); hist.append(Ins(t)); need -= k; nn += 1
        out.append(l); hist.append(c)
    return out, nn

def interleave(main, fill, ratio=None, start=0, end=None):
    idx = [i for i, l in enumerate(main) if l.startswith('v_mfma') and i >= start and (end is None or i < end)]
    if not idx: return main + fill
    out = []; n = len(fill); k = 0; cnt = 0
    s = set(idx)
    for i, l in enumerate(main):
        out.append(l)
        if i in s:
            cnt += 1
            tgt = (n * cnt + len(idx) - 1) // len(idx) if ratio is None else min(n, int(ratio * cnt))
            while k < tgt:
                out.append(fill[k]); k += 1
    out += fill[k:]
    return out
```

```python
import sys
from kfw import *

NAME = "sequential_preLN__linear_kernel_hedgehog__geglu_ffn__prompt_kernel"
FLGA, FLGR, FLGB, FLGC, FLGD = 0, 2048, 4096, 6144, 8192
TSTAMP = 0x8000
PART = 0x10000
OFR = 0x200000
HFR = 0x500000
STAT = 0x780000
CSP = 0x7C0000
ACT = 0x800000
WGU = 0xE00000
WD = 0x1200000
WS_SIZE = 0x1400000
OOB = 0x40000000
L_CS, L_Z1, L_PHIW, L_KVT, L_Z2, L_DUMMY = 0, 1024, 2048, 4096, 9216, 11904
L_Q, L_KV, L_X = 12288, 45056, 94208
L_V, L_PHI, L_WO = 45056, 61440, 61440
L_RL = 12288
L_W3 = 12288
L_RED = 12288
LDS_SIZE = 163840
LOG2E = 1.4426950408889634
SPIN = 400000

import struct
def f2u(x): return struct.unpack('<I', struct.pack('<f', x))[0]
def fl(x): return hex(f2u(x))

class G:
    pass

def build(stamps=False, stop_after=None, opt=None):
    opt = opt or {}
    k = KGen()
    sW = 3
    SX, SWQ, SWS, SWO, SRL, SOUT, SPHI, SDBG = 4, 8, 12, 16, 20, 24, 28, 32
    srd = lambda b: f"s[{b}:{b+3}]"
    sRB, sM, sTH, sCT = 36, 37, 38, 39
    sK, sKq, sXb, sWb, sXo, sWo = 40, 41, 42, 43, 44, 45
    sXL, sKL, sQL = 46, 47, 48
    sT0, sT1, sT2, sT3 = 49, 50, 51, 52
    sSpin = 53
    sTag = 54
    sMode = 56
    sXcc = 57
    sMK = 58
    sMQ = 64
    sE = 66
    sE2 = 68
    sRLn, sRLp, sRLo, sRLd, sRLs, sRLc = 70, 71, 72, 73, 74, 75
    sP0, sP1, sP2, sP3 = 76, 77, 78, 79
    sST = 80
    nst = [0]
    def stamp():
        if not stamps: return
        i = nst[0]; nst[0] += 1
        k(f"s_memtime s[{sE2}:{sE2+1}]\ns_waitcnt lgkmcnt(0)\ns_mov_b32 s{sST+i}, s{sE2}")

    v = lambda n, c=1: f"v{n}" if c == 1 else f"v[{n}:{n+c-1}]"
    a = lambda n, c=1: f"a{n}" if c == 1 else f"a[{n}:{n+c-1}]"
    s = lambda n, c=1: f"s{n}" if c == 1 else f"s[{n}:{n+c-1}]"

    vL = 1
    vXD, vKD, vQD = 10, 14, 17
    vXR, vKR, vQR = 20, 24, 36
    vSEL, vWB, vPHA = 44, 48, 72
    vKW0, vKWd = 96, 97
    vLH16 = 98
    vWOD = 100
    vMU, vRS = 105, 106
    vPQ = 108
    aA, aB, aC, aG, aCS = 128, 144, 160, 176, 192

    def wave0_begin():
        lab = k.uid("Lw0")
        k(f"s_cmp_lg_u32 s{sW}, 0\ns_cbranch_scc1 {lab}\n@cond{{")
        return lab
    def wave0_end(lab):
        k(f"@cond}}\n{lab}:")

    k(f"""
    s_cmp_ge_u32 s2, 256
    s_cbranch_scc1 L_end
    s_getpc_b64 s[60:61]
    s_load_dwordx16 s[36:51], s[0:1], 0
    s_load_dwordx4 s[52:55], s[0:1], 64
    s_load_dwordx2 s[56:57], s[0:1], 80
    s_and_b32 s60, s60, 0xffffff00
    s_mov_b32 s62, L_end-{NAME}+256
    s_mov_b32 s63, 0x20000
    s_lshr_b32 s64, s2, 3
    s_lshl_b32 s64, s64, 12
    v_lshlrev_b32 v2, 4, v0
    buffer_load_dwordx4 v[4:7], v2, s[60:63], s64 offen ; @code
    v_and_b32 v{vL}, 63, v0
    v_lshrrev_b32 v2, 6, v0
    """)
    if stamps:
        k(f"s_memtime s[{sE2}:{sE2+1}]")
    k(f"v_readfirstlane_b32 s{sW}, v2")
    k(f"""
    v_lshrrev_b32 v3, 3, v{vL}
    v_lshl_add_u32 v3, v2, 5, v3
    v_mul_u32_u24 v3, 1280, v3
    v_lshrrev_b32 v8, 4, v{vL}
    v_and_b32 v9, 7, v{vL}
    v_xor_b32 v9, v8, v9
    v_lshl_add_u32 v{vXD}, v9, 4, v3
    v_xor_b32 v9, 4, v9
    v_lshl_add_u32 v{vXD+1}, v9, 4, v3
    v_add_u32 v{vXD+1}, {8*1280}, v{vXD+1}
    v_add_u32 v{vXD+2}, {16*1280}, v{vXD}
    v_add_u32 v{vXD+3}, {16*1280}, v{vXD+1}
    """)
    for j in range(3):
        k(f"""
        v_add_u32 v3, {64*j}, v{vL}
        v_mul_u32_u24 v8, 171, v3
        v_lshrrev_b32 v8, 11, v8
        v_mul_u32_u24 v9, 12, v8
        v_sub_u32 v{vQR+j}, v3, v9
        v_lshl_add_u32 v8, v2, 4, v8
        v_mul_u32_u24 v8, 3840, v8
        v_min_u32 v9, 9, v{vQR+j}
        v_lshl_add_u32 v8, v9, 4, v8
        v_add_u32 v9, 1280, v8
        v_add_u32 v8, {2560-80}, v8
        v_cmp_gt_u32 vcc, 5, v{vQR+j}
        v_cndmask_b32 v{vKD+j}, v8, v9, vcc
        """)
    k("s_waitcnt lgkmcnt(0)")
    if stamps:
        k(f"s_mov_b32 s{sST+nst[0]}, s{sE2}"); nst[0] += 1
    def mk_srd(d, p, n):
        k(f"s_mov_b32 s{d}, s{p}\ns_mov_b32 s{d+1}, s{p+1}\ns_mov_b32 s{d+2}, {n}\ns_mov_b32 s{d+3}, 0x20000")
    mk_srd(SX, 36, 2048*1280); mk_srd(SWQ, 38, 640*3840)
    mk_srd(SPHI, 40, 32*800); mk_srd(SWO, 42, 640*1280)
    mk_srd(SWS, 56, WS_SIZE); mk_srd(SOUT, 52, 2048*1280); mk_srd(SDBG, 54, 256)
    k(f"""
    s_mul_i32 s{sE}, s2, 1366
    s_lshr_b32 s{sE}, s{sE}, 16
    s_mul_i32 s{sE+1}, s{sE}, 48
    s_sub_u32 s{sE+1}, s2, s{sE+1}
    s_cmp_lt_u32 s{sE+1}, 24
    s_cselect_b32 s{SRL}, s46, s48
    s_cselect_b32 s{SRL+1}, s47, s49
    s_cmp_lt_u32 s2, 192
    s_cselect_b32 s{SRL}, s{SRL}, s50
    s_cselect_b32 s{SRL+1}, s{SRL+1}, s51
    s_mov_b32 s{SRL+2}, {640*3072}
    s_mov_b32 s{SRL+3}, 0x20000
    """)
    k(f"""
    s_and_b32 s{sRB}, s2, 7
    s_lshl_b32 s{sRB}, s{sRB}, 1
    s_lshr_b32 s{sT0}, s2, 7
    s_add_u32 s{sRB}, s{sRB}, s{sT0}
    s_lshr_b32 s{sM}, s2, 3
    s_and_b32 s{sM}, s{sM}, 15
    s_lshr_b32 s{sTH}, s{sM}, 3
    s_and_b32 s{sCT}, s{sM}, 7
    s_mul_i32 s{sT0}, s{sRB}, 3
    s_add_u32 s{sT0}, s{sT0}, s{sM}
    s_mul_i32 s{sT1}, s{sT0}, 205
    s_lshr_b32 s{sT1}, s{sT1}, 11
    s_mul_i32 s{sT1}, s{sT1}, 10
    s_sub_u32 s{sK}, s{sT0}, s{sT1}
    s_mov_b32 s{sKq}, s{sK}
    s_mul_i32 s{sXb}, s{sRB}, 163840
    s_mul_i32 s{sWb}, s{sM}, 80
    s_lshl_b32 s{sXL}, s{sW}, 12
    s_add_u32 s{sXL}, s{sXL}, {L_X}
    s_mul_i32 s{sKL}, s{sW}, 3072
    s_add_u32 s{sKL}, s{sKL}, {L_KV}
    s_lshl_b32 s{sQL}, s{sW}, 11
    s_add_u32 s{sQL}, s{sQL}, {L_Q}
    """)
    for j in range(3):
        k(f"v_cmp_ne_u32 s[{sMK+2*j}:{sMK+2*j+1}], 10, v{vQR+j}")

    def dma_stage(i):
        slot = i % 4
        k(f"""
        s_lshl_b32 s{sT0}, s{sK}, 7
        s_add_u32 s{sXo}, s{sXb}, s{sT0}
        s_mul_i32 s{sT0}, s{sK}, 245760
        s_add_u32 s{sWo}, s{sWb}, s{sT0}
        s_add_u32 s{sK}, s{sK}, 1
        s_cmp_eq_u32 s{sK}, 10
        s_cselect_b32 s{sK}, 0, s{sK}
        """)
        for j in range(3):
            k(f"""
            s_mov_b64 exec, s[{sMK+2*j}:{sMK+2*j+1}]
            s_add_u32 m0, s{sKL}, {slot*12288 + j*1024}
            buffer_load_dwordx4 v{vKD+j}, {srd(SWQ)}, s{sWo} offen lds ; @st{i}
            """)
        k("s_mov_b64 exec, -1")
        for j in range(4):
            k(f"""
            s_add_u32 m0, s{sXL}, {slot*16384 + j*1024}
            buffer_load_dwordx4 v{vXD+j}, {srd(SX)}, s{sXo} offen lds ; @st{i}
            """)
    def dma_q(i):
        slot = i % 4
        k(f"""
        s_mul_i32 s{sT0}, s{sKq}, 245760
        s_add_u32 s{sWo}, s{sWb}, s{sT0}
        s_add_u32 s{sKq}, s{sKq}, 1
        s_cmp_eq_u32 s{sKq}, 10
        s_cselect_b32 s{sKq}, 0, s{sKq}
        """)
        for j in range(2):
            k(f"""
            s_add_u32 m0, s{sQL}, {slot*8192 + j*1024}
            buffer_load_dwordx4 v{vQD+j}, {srd(SWQ)}, s{sWo} offen lds ; @q{i}
            """)

    for i in range(4): dma_stage(i)
    k(f"""
    s_mul_i32 s{sT0}, s{sM}, 1600
    v_lshlrev_b32 v3, 3, v0
    v_cmp_gt_u32 vcc, 200, v0
    v_mov_b32 v8, {OOB}
    v_cndmask_b32 v3, v8, v3, vcc
    buffer_load_dwordx2 v[{vPQ}:{vPQ+1}], v3, {srd(SPHI)}, s{sT0} offen ; @phi
    """)
    lab = k.uid("Ln")
    k(f"""
    s_getreg_b32 s{sXcc}, hwreg(HW_REG_XCC_ID)
    s_and_b32 s{sXcc}, s{sXcc}, 15
    s_or_b32 s{sT0}, s2, s{sW}
    s_cmp_lg_u32 s{sT0}, 0
    s_cbranch_scc1 {lab}
    @cond{{
    s_memrealtime s[{sE}:{sE+1}]
    s_waitcnt lgkmcnt(0)
    s_lshl_b32 s{sE+1}, s{sE+1}, 8
    s_or_b32 s{sE+1}, s{sE+1}, 0x80
    v_mov_b32 v4, s{sE}
    v_mov_b32 v5, s{sE+1}
    v_mov_b32 v6, 0
    s_mov_b64 exec, 1
    buffer_store_dwordx2 v[4:5], v6, {srd(SDBG)}, 0 offen sc1
    s_mov_b64 exec, -1
    s_waitcnt vmcnt(0)
    @cond}}
    {lab}:
    """)
    k(f"""
    v_mov_b32 v4, 0
    v_mov_b32 v5, 0
    v_mov_b32 v6, 0
    v_mov_b32 v7, 0
    v_lshlrev_b32 v3, 4, v0
    ds_write_b128 v3, v[4:7]
    v_min_u32 v3, {191*16}, v3
    ds_write_b128 v3, v[4:7] offset:{L_Z2}
    v_mov_b32 v{vSEL}, 0x3f803f80
    v_mov_b32 v{vSEL+1}, 0x3f803f80
    v_mov_b32 v{vSEL+2}, 0x3f803f80
    v_mov_b32 v{vSEL+3}, 0x3f803f80
    v_mul_u32_u24 v3, 192, v0
    ds_write_b128 v3, v[{vSEL}:{vSEL+3}] offset:{L_KV+160}
    """)
    k(f"""
    v_lshrrev_b32 v2, 6, v0
    v_lshrrev_b32 v4, 4, v{vL}
    v_bfe_u32 v5, v{vL}, 2, 2
    v_and_b32 v6, 3, v{vL}
    v_and_b32 v7, 31, v{vL}
    v_lshrrev_b32 v{vLH16}, 5, v{vL}
    v_lshlrev_b32 v{vLH16}, 4, v{vLH16}
    """)
    k(f"""
    v_and_b32 v3, 15, v{vL}
    v_and_b32 v8, 1, v4
    v_cmp_eq_u32 vcc, v3, v8
    v_cndmask_b32 v{vSEL}, 0, v{vSEL}, vcc
    v_mov_b32 v{vSEL+1}, v{vSEL}
    v_mov_b32 v{vSEL+2}, v{vSEL}
    v_mov_b32 v{vSEL+3}, v{vSEL}
    """)
    k(f"""
    v_lshlrev_b32 v3, 7, v7
    v_lshl_add_u32 v3, v2, 12, v3
    v_add_u32 v3, {L_X}, v3
    v_bfe_u32 v8, v7, 1, 3
    v_lshrrev_b32 v9, 5, v{vL}
    v_xor_b32 v8, v8, v9
    """)
    for js in range(4):
        k(f"""
        v_add_u32 v9, {js}, v2
        v_and_b32 v9, 3, v9
        v_lshlrev_b32 v9, 1, v9
        v_xor_b32 v9, v9, v8
        v_lshl_add_u32 v{vXR+js}, v9, 4, v3
        """)
    def tab(t):
        b = [t[i & 1][i >> 1] for i in range(8)]
        lo = sum(b[i] << (8*i) for i in range(4)); hi = sum(b[4+i] << (8*i) for i in range(4))
        return lo, hi
    TA = [[1,2,3,4],[5,6,7,8]]
    TB = [[0,12,13,14],[9,15,18,19]]
    TC = [[10,11,20,22],[16,17,21,23]]
    TE = [[0,10,11,12],[9,13,14,15]]
    k(f"""
    v_and_b32 v8, 1, v4
    v_cmp_eq_u32 vcc, 0, v8
    v_lshlrev_b32 v8, 3, v6
    v_lshrrev_b32 v9, 1, v4
    v_lshl_add_u32 v9, v9, 3, v5
    """)
    def lookup(dst, t):
        lo, hi = tab(t)
        k(f"""
        v_mov_b32 v3, {hex(hi)}
        v_mov_b32 v{dst}, {hex(lo)}
        v_cndmask_b32 v3, v3, v{dst}, vcc
        v_lshrrev_b32 v3, v8, v3
        v_and_b32 v{dst}, 0xff, v3
        """)
    vt = 128
    for ti, t in enumerate((TA, TB, TC)):
        lookup(vt + ti, t)
    lookup(vt + 3, TE)
    k(f"v_mul_u32_u24 v3, 192, v9\nv_add_u32 v3, {L_KV}, v3")
    for ti in range(3):
        k(f"v_lshl_add_u32 v{vt+4+ti}, v{vt+ti}, 3, v3")
    k(f"""
    v_lshlrev_b32 v3, 7, v9
    v_add_u32 v3, {L_Q}, v3
    v_lshrrev_b32 v{vt+10}, 1, v5
    v_lshlrev_b32 v{vt+10}, 6, v{vt+10}
    """)
    for qi, src in enumerate((vt, vt + 3)):
        k(f"""
        v_lshl_add_u32 v{vt+11}, v{src}, 3, v{vt+10}
        v_and_b32 v{vt+11}, 127, v{vt+11}
        v_add_u32 v{vt+7+qi}, v3, v{vt+11}
        """)
    for js in range(4):
        k(f"""
        v_add_u32 v3, {js}, v2
        v_and_b32 v3, 3, v3
        v_mul_u32_u24 v{vt+11}, 3072, v3
        v_lshlrev_b32 v3, 11, v3
        """)
        for ti in range(3):
            k(f"v_add_u32 v{vKR+4*ti+js}, v{vt+4+ti}, v{vt+11}")
        for qi in range(2):
            k(f"v_add_u32 v{vQR+4*qi+js}, v{vt+7+qi}, v3")
    k(f"""
    v_lshrrev_b32 v3, 3, v{vL}
    v_lshl_add_u32 v3, v2, 4, v3
    v_mul_u32_u24 v3, 3840, v3
    v_and_b32 v8, 1, v4
    v_lshlrev_b32 v8, 2, v8
    v_xor_b32 v8, v{vL}, v8
    v_and_b32 v8, 7, v8
    v_min_u32 v8, 4, v8
    v_lshl_add_u32 v{vQD}, v8, 4, v3
    v_add_u32 v{vQD+1}, {8*3840}, v{vQD}
    """)
    for j in range(5):
        k(f"""
        v_add_u32 v3, {64*j}, v{vL}
        v_mul_u32_u24 v8, 205, v3
        v_lshrrev_b32 v8, 11, v8
        v_mul_u32_u24 v9, 10, v8
        v_sub_u32 v3, v3, v9
        v_and_b32 v9, 0x13, v8
        v_bfe_u32 v{vt}, v8, 2, 1
        v_lshl_or_b32 v9, v{vt}, 3, v9
        v_bfe_u32 v{vt}, v8, 3, 1
        v_lshl_or_b32 v9, v{vt}, 2, v9
        v_mul_u32_u24 v9, 1280, v9
        v_lshl_add_u32 v{vWOD+j}, v3, 4, v9
        """)
    k(f"""
    v_cmp_le_u32 vcc, 96, v0
    v_cndmask_b32 v8, 0, 1, vcc
    v_mul_u32_u24 v9, 96, v8
    v_sub_u32 v3, v0, v9
    v_subrev_u32 v{vt}, 192, v0
    v_cmp_le_u32 vcc, 24, v{vt}
    v_cndmask_b32 v{vt+1}, 0, 1, vcc
    v_mul_u32_u24 v9, 24, v{vt+1}
    v_sub_u32 v{vt}, v{vt}, v9
    """)
    k(f"""
    v_cmp_le_u32 s[{sE}:{sE+1}], 64, v3
    v_subrev_u32 v9, 64, v3
    v_lshlrev_b32 v9, 1, v9
    v_cndmask_b32 v3, v3, v9, s[{sE}:{sE+1}]
    v_and_b32 v{vt+2}, 31, v3
    v_lshrrev_b32 v{vt+3}, 5, v3
    v_cmp_le_u32 s[{sE2}:{sE2+1}], 16, v{vt}
    v_subrev_u32 v9, 16, v{vt}
    v_lshlrev_b32 v9, 1, v9
    v_cndmask_b32 v{vt}, v{vt}, v9, s[{sE2}:{sE2+1}]
    v_and_b32 v{vt+4}, 7, v{vt}
    v_add_u32 v{vt+4}, 32, v{vt+4}
    v_lshrrev_b32 v{vt+5}, 3, v{vt}
    v_cmp_le_u32 vcc, 192, v0
    v_cndmask_b32 v{vt+2}, v{vt+2}, v{vt+4}, vcc
    v_cndmask_b32 v{vt+3}, v{vt+3}, v{vt+5}, vcc
    v_cndmask_b32 v8, v8, v{vt+1}, vcc
    s_and_b64 s[{sE2}:{sE2+1}], s[{sE2}:{sE2+1}], vcc
    s_andn2_b64 s[{sE}:{sE+1}], s[{sE}:{sE+1}], vcc
    s_or_b64 s[{sE}:{sE+1}], s[{sE}:{sE+1}], s[{sE2}:{sE2+1}]
    v_mul_u32_u24 v8, 2560, v8
    v_lshl_add_u32 v8, v{vt+2}, 6, v8
    v_lshl_add_u32 v8, v{vt+3}, 3, v8
    v_add_u32 v8, {L_KVT}, v8
    v_add_u32 v9, 32, v8
    v_cndmask_b32 v{vKW0}, v8, v9, s[{sE}:{sE+1}]
    v_mov_b32 v8, 16
    v_mov_b32 v9, 64
    v_cndmask_b32 v8, v8, v9, s[{sE}:{sE+1}]
    v_cmp_le_u32 vcc, 240, v0
    v_mov_b32 v9, {L_DUMMY}
    v_cndmask_b32 v{vKW0}, v{vKW0}, v9, vcc
    v_add_u32 v{vKWd}, v{vKW0}, v8
    """)

    def p1_reads(i, js, buf):
        slot = i % 4; n = 4*i + js
        k(f"ds_read_b128 {a(4*n,4)}, v{vXR+js} offset:{slot*16384} ; @r{n}")
        for t in range(3):
            b = vWB + 12*buf + 4*t
            k(f"ds_read_b64_tr_b16 {v(b,2)}, v{vKR+4*t+js} offset:{slot*12288} ; @r{n}")
            k(f"ds_read_b64_tr_b16 {v(b+2,2)}, v{vKR+4*t+js} offset:{slot*12288+768} ; @r{n}")
    def p1_mfma(i, js, buf):
        n = 4*i + js
        for t, acc in enumerate((aA, aB, aC)):
            b = vWB + 12*buf + 4*t
            k(f"v_mfma_f32_32x32x16_bf16 {v(acc,16)}, {v(b,4)}, {a(4*n,4)}, {'0' if n == 0 else v(acc,16)}")
        k(f"v_mfma_f32_32x32x16_bf16 {v(aG,16)}, {a(4*n,4)}, {a(4*n,4)}, {'0' if n == 0 else v(aG,16)}")
        if js == 0:
            for t in range(3):
                b = vWB + 12*buf + 4*t
                k(f"v_mfma_f32_16x16x32_bf16 {v(aCS+4*t,4)}, {v(vSEL,4)}, {v(b,4)}, {'0' if n == 0 else v(aCS+4*t,4)}")
    k("@waitvm st0\ns_waitcnt lgkmcnt(0)\ns_barrier")
    stamp()
    k(f"""
    v_cmp_le_u32 vcc, 100, v0
    v_cndmask_b32 v8, 0, 1, vcc
    v_mul_u32_u24 v9, 100, v8
    v_sub_u32 v3, v0, v9
    v_add_u32 v9, 80, v3
    v_mov_b32 v2, 100
    v_cmp_le_u32 s[{sE}:{sE+1}], v2, v9
    v_subrev_u32 v2, 100, v9
    v_cndmask_b32 v9, v9, v2, s[{sE}:{sE+1}]
    v_cndmask_b32 v3, v9, v3, vcc
    v_mul_u32_u24 v8, 960, v8
    v_lshl_add_u32 v3, v3, 3, v8
    v_add_u32 v3, {L_PHIW}, v3
    v_cmp_le_u32 vcc, 200, v0
    v_mov_b32 v8, {L_DUMMY}
    v_cndmask_b32 v3, v3, v8, vcc
    @waitvm phi
    ds_write_b64 v3, v[{vPQ}:{vPQ+1}] ; @phiw
    """)
    p1_reads(0, 0, 0)
    for n in range(40):
        i, js = divmod(n, 4); buf = n & 1
        if n == 39:
            k(f"@waitlg r{n}")
        elif js < 3:
            p1_reads(i, js+1, buf ^ 1)
            k(f"@waitlg r{n}")
        else:
            k(f"@waitboth st{i+1} r{n}\ns_barrier")
            if i + 4 < 10: dma_stage(i + 4)
            else: dma_q(i + 4 - 10)
            p1_reads(i+1, 0, buf ^ 1)
        p1_mfma(i, js, buf)
    dma_q(3)
    stamp()
    vCS, vKB = 204, 244
    def cs_add(ntile, csbase):
        k(f"v_lshlrev_b32 v2, 2, v{vL}\ns_mov_b64 exec, 0xffff")
        for t in range(ntile):
            k(f"ds_add_f32 v2, v{aCS+4*t} offset:{L_CS + (csbase+t)*128}")
            k(f"ds_add_f32 v2, v{aCS+4*t+1} offset:{L_CS + (csbase+t)*128 + 64}")
        k("s_mov_b64 exec, -1\ns_waitcnt lgkmcnt(0)\ns_barrier")
    cs_add(3, 0)
    def wo_dma(i):
        k(f"""
        s_add_u32 s{sT0}, s{sW}, {4*i}
        s_mul_i32 s{sT1}, s{sT0}, 40960
        s_mul_i32 s{sT2}, s{sCT}, 160
        s_add_u32 s{sT1}, s{sT1}, s{sT2}
        s_mul_i32 s{sT0}, s{sT0}, 5120
        """)
        for j in range(5):
            k(f"""
            s_add_u32 m0, s{sT0}, {L_WO + j*1024}
            buffer_load_dwordx4 v{vWOD+j}, {srd(SWO)}, s{sT1} offen lds ; @wo
            """)
    for i in (2, 3, 4): wo_dma(i)
    for t in range(3):
        for j in range(4 if t < 2 else 2):
            k(f"ds_read_b128 {v(vCS+16*t+4*j,4)}, v{vLH16} offset:{L_CS + t*128 + j*32} ; @cs")
    k(f"""
    v_lshrrev_b32 v2, 5, v{vL}
    v_and_b32 v3, 1, v{vL}
    v_cmp_eq_u32 vcc, v2, v3
    v_mul_u32_u24 v2, 960, v2
    v_bfe_u32 v3, v{vL}, 2, 2
    v_mul_u32_u24 v3, 40, v3
    v_add_u32 v2, v2, v3
    v_bfe_u32 v3, v{vL}, 4, 1
    v_lshl_add_u32 v2, v3, 4, v2
    v_bfe_u32 v3, v{vL}, 1, 1
    v_lshl_add_u32 v2, v3, 3, v2
    v_add_u32 v2, {L_PHIW}, v2
    v_mov_b32 v3, {L_Z1}
    v_cndmask_b32 v2, v3, v2, vcc
    """)
    for st in range(3):
        for tl in range(2):
            b = vPHA + 4*(2*st + tl)
            k(f"ds_read_b64_tr_b16 {v(b,2)}, v2 offset:{st*320 + tl*32} ; @pha")
            k(f"ds_read_b64_tr_b16 {v(b+2,2)}, v2 offset:{st*320 + tl*32 + 160} ; @pha")
    def m64(val):
        k(f"s_mov_b32 s{sE}, {hex(val & 0xffffffff)}\ns_mov_b32 s{sE+1}, {hex(val >> 32)}")
    m64(0xAAAAAAAAAAAAAAAA)
    for i in range(8): k(f"v_cndmask_b32 v{aG+2*i}, v{aG+2*i}, v{aG+2*i+1}, s[{sE}:{sE+1}]")
    m64(0xCCCCCCCCCCCCCCCC)
    for i in range(4): k(f"v_cndmask_b32 v{aG+4*i}, v{aG+4*i}, v{aG+4*i+2}, s[{sE}:{sE+1}]")
    m64(0xFF00FF00FF00FF00)
    for i in range(2): k(f"v_cndmask_b32 v{aG+8*i}, v{aG+8*i}, v{aG+8*i+4}, s[{sE}:{sE+1}]")
    m64(0xFFFF0000FFFF0000)
    k(f"v_cndmask_b32 v{aG}, v{aG}, v{aG+8}, s[{sE}:{sE+1}]")
    m64(0xF0F0F0F00F0F0F0F)
    k(f"""
    v_cndmask_b32 v{aG}, 0, v{aG}, s[{sE}:{sE+1}]
    v_mov_b32 v{aG+1}, v{aG}
    v_mul_f32 v{vMU}, {fl(-1.0/640)}, v{aC+8}
    v_permlane32_swap_b32 v{aG}, v{aG+1}
    v_add_f32 v{aG}, v{aG}, v{aG+1}
    v_mul_f32 v{aG}, {fl(1.0/640)}, v{aG}
    v_fma_f32 v{aG}, -v{vMU}, v{vMU}, v{aG}
    v_max_f32 v{aG}, 0, v{aG}
    v_add_f32 v{aG}, {fl(1e-5)}, v{aG}
    v_rsq_f32 v{vRS}, v{aG}
    @waitlg cs
    """)
    def pkfma_fix(acc, cs, n):
        for i in range(0, n, 2):
            k(f"v_pk_fma_f32 {v(acc+i,2)}, {v(cs+i,2)}, {v(vMU,2)}, {v(acc+i,2)} op_sel:[0,1,0] op_sel_hi:[1,1,1]" if False else
              f"v_pk_fma_f32 {v(acc+i,2)}, {v(cs+i,2)}, {v(vMU-1,2)}, {v(acc+i,2)} op_sel:[0,1,0] op_sel_hi:[1,1,1]")
    pkfma_fix(aA, vCS, 16); pkfma_fix(aB, vCS+16, 16); pkfma_fix(aC, vCS+32, 8)
    for i in range(8): k(f"v_cvt_pk_bf16_f32 v{vKB+i}, v{aA+2*i}, v{aA+2*i+1}")
    for i in range(2): k(f"v_cvt_pk_bf16_f32 v{vKB+8+i}, v{aB+2*i}, v{aB+2*i+1}")
    k(f"v_mov_b32 v{vKB+10}, 0\nv_mov_b32 v{vKB+11}, 0")
    vPA, vPB = 204, 220
    def phi_mfma():
        k("@waitlg pha")
        for st in range(3):
            for tl, acc in enumerate((vPA, vPB)):
                b = vPHA + 4*(2*st + tl)
                k(f"v_mfma_f32_32x32x16_bf16 {v(acc,16)}, {v(b,4)}, {v(vKB+4*st,4)}, {'0' if st == 0 else v(acc,16)}")
    phi_mfma()
    vVB = aG + 2
    for i, r in enumerate([aB+4+2*x for x in range(6)] + [aC+2*x for x in range(4)]):
        k(f"v_pk_mul_f32 {v(r,2)}, {v(r,2)}, {v(vRS,2)} op_sel_hi:[1,0]")
        k(f"v_cvt_pk_bf16_f32 v{vVB+i}, v{r}, v{r+1}")
    k(f"""
    v_lshrrev_b32 v2, 1, v0
    v_and_b32 v2, 0x60, v2
    v_and_b32 v3, 31, v{vL}
    v_or_b32 v2, v2, v3
    v_lshrrev_b32 v4, 5, v{vL}
    v_lshlrev_b32 v5, 13, v4
    v_lshl_add_u32 v5, v2, 6, v5
    v_sub_u32 v6, v5, v{vLH16}
    v_lshl_add_u32 v7, v4, 3, v5
    v_mov_b32 v8, 0x3f80
    ds_write_b64 v6, {v(vVB,2)} offset:{L_V+16}
    ds_write_b64 v5, {v(vVB+2,2)} offset:{L_V+24}
    ds_write_b64 v5, {v(vVB+4,2)} offset:{L_V+32}
    ds_write_b64 v7, {v(vVB+6,2)} offset:{L_V}
    ds_write_b64 v7, {v(vVB+8,2)} offset:{L_V+8}
    ds_write_b32 v5, v8 offset:{L_V+40}
    v_mul_u32_u24 v9, 192, v2
    v_mul_u32_u24 v4, 80, v4
    v_add_u32 v9, v9, v4
    """)
    def softmax(out):
        P = [vPA + i for i in range(16)] + [vPB + i for i in range(4)]
        EP, EN = 128, 148
        k(f"v_max3_f32 v2, v{P[0]}, v{P[1]}, v{P[2]}\nv_min3_f32 v3, v{P[0]}, v{P[1]}, v{P[2]}")
        k(f"v_max3_f32 v4, v{P[3]}, v{P[4]}, v{P[5]}\nv_min3_f32 v5, v{P[3]}, v{P[4]}, v{P[5]}")
        for i in range(6, 20, 4):
            if i + 3 < 20:
                k(f"v_max3_f32 v2, v{P[i]}, v{P[i+1]}, v2\nv_min3_f32 v3, v{P[i]}, v{P[i+1]}, v3")
                k(f"v_max3_f32 v4, v{P[i+2]}, v{P[i+3]}, v4\nv_min3_f32 v5, v{P[i+2]}, v{P[i+3]}, v5")
            else:
                k(f"v_max3_f32 v2, v{P[i]}, v{P[i+1]}, v2\nv_min3_f32 v3, v{P[i]}, v{P[i+1]}, v3")
        k(f"""
        v_max_f32 v2, v2, v4
        v_min_f32 v3, v3, v5
        v_mul_f32 v4, {fl(LOG2E)}, v{vRS}
        v_mul_f32 v6, v4, v2
        v_mul_f32 v7, v4, v3
        """)
        for i in range(0, 20, 2):
            k(f"v_pk_fma_f32 {v(EP+i,2)}, {v(P[i],2)}, v[4:5], v[6:7] op_sel_hi:[1,0,0] neg_lo:[0,0,1] neg_hi:[0,0,1]")
            k(f"v_pk_fma_f32 {v(EN+i,2)}, {v(P[i],2)}, v[4:5], v[6:7] op_sel:[0,0,1] op_sel_hi:[1,0,1] neg_lo:[1,0,0] neg_hi:[1,0,0]")
        for i in range(20):
            k(f"v_exp_f32 v{EP+i}, v{EP+i}\nv_exp_f32 v{EN+i}, v{EN+i}")
        k(f"v_pk_add_f32 v[2:3], {v(EP,2)}, {v(EP+2,2)}\nv_pk_add_f32 v[4:5], {v(EN,2)}, {v(EN+2,2)}")
        for i in range(4, 20, 2):
            k(f"v_pk_add_f32 v[2:3], v[2:3], {v(EP+i,2)}\nv_pk_add_f32 v[4:5], v[4:5], {v(EN+i,2)}")
        k("""
        v_add_f32 v2, v2, v3
        v_add_f32 v4, v4, v5
        v_rcp_f32 v2, v2
        v_rcp_f32 v4, v4
        """)
        for i in range(0, 20, 2):
            k(f"v_pk_mul_f32 {v(EP+i,2)}, {v(EP+i,2)}, v[2:3] op_sel_hi:[1,0]")
            k(f"v_pk_mul_f32 {v(EN+i,2)}, {v(EN+i,2)}, v[4:5] op_sel_hi:[1,0]")
        for i in range(10):
            k(f"v_cvt_pk_bf16_f32 v{out+i}, v{EP+2*i}, v{EP+2*i+1}")
        for i in range(10):
            k(f"v_cvt_pk_bf16_f32 v{out+10+i}, v{EN+2*i}, v{EN+2*i+1}")
    vPK = 236
    softmax(vPK)
    for i in range(5):
        k(f"ds_write_b128 v9, {v(vPK+4*i,4)} offset:{L_PHI + 16*i}")
    k(f"""
    v_lshrrev_b32 v2, 5, v{vL}
    v_bfe_u32 v3, v{vL}, 2, 2
    v_lshl_add_u32 v2, v2, 3, v3
    v_bfe_u32 v3, v{vL}, 4, 1
    v_and_b32 v4, 3, v{vL}
    v_lshl_add_u32 v3, v3, 2, v4
    v_lshlrev_b32 v3, 3, v3
    s_and_b32 s{sT0}, s{sW}, 1
    s_lshr_b32 s{sT1}, s{sW}, 1
    s_lshl_b32 s{sT2}, s{sT0}, 13
    s_add_u32 s{sT2}, s{sT2}, {L_V}
    v_lshl_add_u32 v4, v2, 6, v3
    v_add_u32 v4, s{sT2}, v4
    s_mul_i32 s{sT2}, s{sT0}, 80
    s_lshl_b32 s{sT3}, s{sT1}, 6
    s_add_u32 s{sT2}, s{sT2}, s{sT3}
    s_add_u32 s{sT2}, s{sT2}, {L_PHI}
    v_mul_u32_u24 v5, 192, v2
    v_add_u32 v5, v5, v3
    v_add_u32 v5, s{sT2}, v5
    s_waitcnt lgkmcnt(0)
    s_barrier
    """)
    vKA, vKBb, vKD_ = 128, 160, 204
    for ks in range(8):
        k(f"ds_read_b64_tr_b16 {v(vKA+4*ks,2)}, v4 offset:{ks*1024} ; @kv{ks}")
        k(f"ds_read_b64_tr_b16 {v(vKA+4*ks+2,2)}, v4 offset:{ks*1024+256} ; @kv{ks}")
        k(f"ds_read_b64_tr_b16 {v(vKBb+4*ks,2)}, v5 offset:{ks*3072} ; @kv{ks}")
        k(f"ds_read_b64_tr_b16 {v(vKBb+4*ks+2,2)}, v5 offset:{ks*3072+768} ; @kv{ks}")
        if ks >= 2:
            kk = ks - 2
            k(f"@waitlg kv{kk}\nv_mfma_f32_32x32x16_bf16 {v(vKD_,16)}, {v(vKA+4*kk,4)}, {v(vKBb+4*kk,4)}, {'0' if kk == 0 else v(vKD_,16)}")
    for kk in (6, 7):
        k(f"@waitlg kv{kk}\nv_mfma_f32_32x32x16_bf16 {v(vKD_,16)}, {v(vKA+4*kk,4)}, {v(vKBb+4*kk,4)}, {v(vKD_,16)}")
    k(f"""
    s_lshl_b32 s{sP0}, s{sM}, 16
    s_lshl_b32 s{sT2}, s{sRB}, 12
    s_add_u32 s{sP0}, s{sP0}, s{sT2}
    s_add_u32 s{sP0}, s{sP0}, {PART}
    s_mul_i32 s{sT2}, s{sT0}, 1536
    s_mul_i32 s{sT3}, s{sT0}, 384
    s_add_u32 s{sT3}, s{sT3}, 3072
    s_cmp_eq_u32 s{sT1}, 0
    s_cselect_b32 s{sT2}, s{sT2}, s{sT3}
    s_cselect_b32 s{sT3}, 4, 1
    s_cselect_b32 s{sE}, 32, 8
    s_lshl_b32 s{sT3}, s{sT3}, 8
    s_add_u32 s{sP0}, s{sP0}, s{sT2}
    s_add_u32 s{sP1}, s{sP0}, s{sT3}
    v_and_b32 v2, 31, v{vL}
    v_lshrrev_b32 v3, 5, v{vL}
    v_mul_u32_u24 v3, s{sE}, v3
    v_add_u32 v3, v3, v2
    v_cmp_gt_u32 vcc, s{sE}, v2
    v_lshlrev_b32 v4, 4, v3
    v_lshlrev_b32 v5, 3, v3
    v_mov_b32 v6, {OOB}
    v_cndmask_b32 v4, v6, v4, vcc
    v_cndmask_b32 v5, v6, v5, vcc
    """)
    for i in range(6): k(f"v_cvt_pk_bf16_f32 v{220+i}, v{vKD_+2*i}, v{vKD_+2*i+1}")
    k(f"""
    buffer_store_dwordx4 v[220:223], v4, {srd(SWS)}, s{sP0} offen sc1 ; @part
    buffer_store_dwordx2 v[224:225], v5, {srd(SWS)}, s{sP1} offen sc1 ; @part
    """)
    def spin_poll(load, cmpcode):
        lp, dn = k.uid("Lp"), k.uid("Ld")
        k(f"s_mov_b32 s{sSpin}, {SPIN}\n{lp}:\n{load}\ns_waitcnt vmcnt(0)\n{cmpcode}\ns_cbranch_vccz {dn}")
        k(f"s_sub_u32 s{sSpin}, s{sSpin}, 1\ns_cmp_gt_i32 s{sSpin}, 0\ns_cbranch_scc1 {lp}\n{dn}:")
    lab = wave0_begin()
    k("v_mov_b32 v6, 0")
    spin_poll(f"buffer_load_dwordx2 v[2:3], v6, {srd(SDBG)}, 0 offen sc1", "v_cmp_eq_u32 vcc, 0, v3")
    k(f"v_readfirstlane_b32 s{sTag}, v2\nv_readfirstlane_b32 s{sTag+1}, v3")
    wave0_end(lab)
    def post(off_code, tagtext, local, payload_tag):
        k(f"@waitvm {payload_tag}\ns_barrier")
        lab = wave0_begin()
        k(off_code)
        k(f"v_mov_b32 v2, s{sTag}\n{tagtext}\nv_mov_b32 v6, 0\ns_mov_b64 exec, 1")
        if local:
            l2, l3 = k.uid("Lf"), k.uid("Lg")
            k(f"""
            s_cmp_eq_u32 s{sMode}, 1
            s_cbranch_scc1 {l2}
            buffer_store_dwordx2 v[2:3], v6, {srd(SWS)}, s{sT0} offen sc1
            s_branch {l3}
            {l2}:
            buffer_store_dwordx2 v[2:3], v6, {srd(SWS)}, s{sT0} offen
            {l3}:
            """)
        else:
            k(f"buffer_store_dwordx2 v[2:3], v6, {srd(SWS)}, s{sT0} offen sc1")
        k("s_mov_b64 exec, -1")
        wave0_end(lab)
    post(f"s_lshl_b32 s{sT0}, s{sM}, 7\ns_lshl_b32 s{sT1}, s{sRB}, 3\ns_add_u32 s{sT0}, s{sT0}, s{sT1}\ns_add_u32 s{sT0}, s{sT0}, {FLGA}\ns_or_b32 s{sT1}, s{sTag+1}, s{sXcc}",
         f"v_mov_b32 v3, s{sT1}", False, "part")
    for i in (0, 1): wo_dma(i)
    stamp()
    aD, aE_ = 128, 144
    def p2_reads(i, js, buf):
        slot = i % 4; n = 4*i + js
        for t in range(2):
            b = vWB + 12*buf + 4*t
            k(f"ds_read_b64_tr_b16 {v(b,2)}, v{vQR+4*t+js} offset:{slot*8192} ; @s{n}")
            k(f"ds_read_b64_tr_b16 {v(b+2,2)}, v{vQR+4*t+js} offset:{slot*8192+512} ; @s{n}")
    def p2_mfma(i, js, buf):
        n = 4*i + js
        for t, acc in enumerate((aD, aE_)):
            b = vWB + 12*buf + 4*t
            k(f"v_mfma_f32_32x32x16_bf16 {v(acc,16)}, {v(b,4)}, {a(4*n,4)}, {'0' if n == 0 else v(acc,16)}")
        if js == 0:
            for t in range(2):
                b = vWB + 12*buf + 4*t
                k(f"v_mfma_f32_16x16x32_bf16 {v(aCS+4*t,4)}, {v(vSEL,4)}, {v(b,4)}, {'0' if n == 0 else v(aCS+4*t,4)}")
    k("@waitvm q0\ns_barrier")
    p2_reads(0, 0, 0)
    for n in range(40):
        i, js = divmod(n, 4); buf = n & 1
        if n == 39:
            k(f"@waitlg s{n}")
        elif js < 3:
            p2_reads(i, js+1, buf ^ 1)
            k(f"@waitlg s{n}")
        else:
            k(f"@waitboth q{i+1} s{n}\ns_barrier")
            if i + 4 < 10: dma_q(i + 4)
            p2_reads(i+1, 0, buf ^ 1)
        p2_mfma(i, js, buf)
    cs_add(2, 3)
    k(f"""
    s_mul_i32 s{sT0}, s2, 1366
    s_lshr_b32 s{sT0}, s{sT0}, 16
    s_mul_i32 s{sT1}, s{sT0}, 48
    s_sub_u32 s{sT1}, s2, s{sT1}
    s_cmp_ge_u32 s{sT1}, 24
    s_cselect_b32 s{sT2}, 1, 0
    s_mul_i32 s{sT3}, s{sT2}, 24
    s_sub_u32 s{sT1}, s{sT1}, s{sT3}
    s_mul_i32 s{sRLo}, s{sT0}, {160*3072}
    s_lshl_b32 s{sT3}, s{sT1}, 7
    s_add_u32 s{sRLo}, s{sRLo}, s{sT3}
    s_lshl_b32 s{sT1}, s{sT1}, 2
    s_add_u32 s{sT1}, s{sT1}, s{sW}
    s_lshl_b32 s{sRLc}, s{sT1}, 7
    s_lshl_b32 s{sT3}, s{sT2}, 6
    s_add_u32 s{sRLc}, s{sRLc}, s{sT3}
    s_mul_i32 s{sT3}, s{sT0}, 12288
    s_add_u32 s{sRLc}, s{sRLc}, s{sT3}
    s_add_u32 s{sRLc}, s{sRLc}, {CSP}
    s_mul_i32 s{sT3}, s{sT1}, 171
    s_lshr_b32 s{sT3}, s{sT3}, 9
    s_mul_i32 s{sE}, s{sT3}, 3
    s_sub_u32 s{sE}, s{sT1}, s{sE}
    s_mul_i32 s{sRLd}, s{sT3}, {120*1024}
    s_lshl_b32 s{sE}, s{sE}, 10
    s_add_u32 s{sRLd}, s{sRLd}, s{sE}
    s_mul_i32 s{sE}, s{sT0}, {30*1024}
    s_add_u32 s{sRLd}, s{sRLd}, s{sE}
    s_lshl_b32 s{sE}, s{sT2}, 8
    s_add_u32 s{sRLd}, s{sRLd}, s{sE}
    s_add_u32 s{sRLd}, s{sRLd}, {WGU}
    s_mov_b32 s{sRLn}, 5
    s_mov_b32 s{sRLp}, 3072
    s_mov_b32 s{sRLs}, 6144
    """)
    lgu = k.uid("Lgu")
    k(f"""
    s_cmp_lt_u32 s2, 192
    s_cbranch_scc1 {lgu}
    s_sub_u32 s{sT0}, s2, 192
    s_mul_i32 s{sT1}, s{sT0}, 205
    s_lshr_b32 s{sT1}, s{sT1}, 11
    s_mul_i32 s{sT2}, s{sT1}, 10
    s_sub_u32 s{sT0}, s{sT0}, s{sT2}
    s_mul_i32 s{sRLo}, s{sT1}, {256*1280}
    s_lshl_b32 s{sT2}, s{sT0}, 7
    s_add_u32 s{sRLo}, s{sRLo}, s{sT2}
    s_lshl_b32 s{sT0}, s{sT0}, 2
    s_add_u32 s{sT0}, s{sT0}, s{sW}
    s_mul_i32 s{sT2}, s{sT0}, 205
    s_lshr_b32 s{sT2}, s{sT2}, 10
    s_mul_i32 s{sT3}, s{sT2}, 5
    s_sub_u32 s{sT3}, s{sT0}, s{sT3}
    s_mul_i32 s{sRLd}, s{sT2}, {240*1024}
    s_lshl_b32 s{sT3}, s{sT3}, 10
    s_add_u32 s{sRLd}, s{sRLd}, s{sT3}
    s_mul_i32 s{sT3}, s{sT1}, {40*1024}
    s_add_u32 s{sRLd}, s{sRLd}, s{sT3}
    s_add_u32 s{sRLd}, s{sRLd}, {WD}
    s_mov_b32 s{sRLc}, {OOB}
    s_mov_b32 s{sRLn}, 8
    s_mov_b32 s{sRLp}, 1280
    s_mov_b32 s{sRLs}, 5120
    s_cmp_lt_u32 s2, 252
    s_cselect_b32 s{sRLd}, s{sRLd}, {OOB}
    s_cselect_b32 s{sRLo}, s{sRLo}, {OOB}
    {lgu}:
    """)
    k(f"""
    v_lshrrev_b32 v2, 3, v{vL}
    v_mul_lo_u32 v2, v2, s{sRLp}
    v_bfe_u32 v3, v{vL}, 4, 1
    s_and_b32 s{sT0}, s{sW}, 1
    s_lshl_b32 s{sT0}, s{sT0}, 1
    v_or_b32 v3, s{sT0}, v3
    v_lshlrev_b32 v3, 1, v3
    v_and_b32 v4, 7, v{vL}
    v_xor_b32 v3, v3, v4
    v_lshl_add_u32 v2, v3, 4, v2
    s_mul_i32 s{sT0}, s{sW}, s{sRLp}
    s_lshl_b32 s{sT0}, s{sT0}, 3
    s_add_u32 s{sT0}, s{sT0}, s{sRLo}
    s_lshl_b32 s{sT1}, s{sRLp}, 5
    s_lshl_b32 s{sT2}, s{sW}, 10
    s_add_u32 s{sT2}, s{sT2}, {L_RL}
    """)
    for i in range(8):
        if i == 5:
            k(f"s_cmp_eq_u32 s{sRLn}, 5\ns_cselect_b32 s{sT0}, {OOB}, s{sT0}")
        k(f"""
        s_add_u32 m0, s{sT2}, {i*4096}
        buffer_load_dwordx4 v2, {srd(SRL)}, s{sT0} offen lds ; @rl
        s_add_u32 s{sT0}, s{sT0}, s{sT1}
        """)
    for j in range(4): k(f"ds_read_b128 {v(vCS+4*j,4)}, v{vLH16} offset:{L_CS + 3*128 + j*32} ; @cs2")
    k(f"ds_read_b128 {v(vCS+16,4)}, v{vLH16} offset:{L_CS + 4*128} ; @cs2\n@waitlg cs2")
    pkfma_fix(aD, vCS, 16); pkfma_fix(aE_, vCS+16, 4)
    for i in range(8): k(f"v_cvt_pk_bf16_f32 v{vKB+i}, v{aD+2*i}, v{aD+2*i+1}")
    for i in range(2): k(f"v_cvt_pk_bf16_f32 v{vKB+8+i}, v{aE_+2*i}, v{aE_+2*i+1}")
    k(f"v_mov_b32 v{vKB+10}, 0\nv_mov_b32 v{vKB+11}, 0")
    phi_mfma()
    softmax(vPQ)
    stamp()
    k(f"""
    v_lshrrev_b32 v2, 4, v{vL}
    v_bfe_u32 v3, v{vL}, 2, 2
    v_lshl_add_u32 v4, v2, 3, v3
    v_lshlrev_b32 v4, 7, v4
    v_lshrrev_b32 v3, 1, v3
    v_and_b32 v5, 1, v2
    v_lshl_or_b32 v3, v5, 1, v3
    v_lshlrev_b32 v3, 1, v3
    v_and_b32 v5, 1, v{vL}
    v_bfe_u32 v6, v{vL}, 1, 1
    s_cmp_eq_u32 s{sRLn}, 5
    s_cselect_b64 vcc, -1, 0
    v_cndmask_b32 v7, v6, v5, vcc
    v_cndmask_b32 v8, v5, v6, vcc
    s_lshl_b32 s{sT0}, s{sW}, 1
    v_or_b32 v7, s{sT0}, v7
    v_xor_b32 v7, v7, v3
    v_lshl_add_u32 v4, v7, 4, v4
    v_lshl_add_u32 v4, v8, 3, v4
    v_add_u32 v4, {L_RL}, v4
    v_lshrrev_b32 v5, 1, v2
    v_mul_u32_u24 v5, 3072, v5
    v_and_b32 v6, 1, v2
    v_lshl_add_u32 v5, v6, 9, v5
    v_and_b32 v6, 15, v{vL}
    v_lshl_add_u32 v5, v6, 4, v5
    v_lshlrev_b32 v7, 4, v{vL}
    v_cndmask_b32 v5, v7, v5, vcc
    v_mov_b32 v7, 0
    v_mov_b32 v8, 0x3f803f80
    @waitvm rl
    s_barrier
    """)
    for i in range(8):
        b = 128 + 4*i
        k(f"ds_read_b64_tr_b16 {v(b,2)}, v4 offset:{i*4096} ; @rr{i}\nds_read_b64_tr_b16 {v(b+2,2)}, v4 offset:{i*4096+512} ; @rr{i}")
    for i in range(8):
        b = 128 + 4*i
        if i == 5:
            k(f"s_cmp_eq_u32 s{sRLn}, 5\ns_cselect_b32 s{sRLd}, {OOB}, s{sRLd}")
        k(f"@waitlg rr{i}\nbuffer_store_dwordx4 {v(b,4)}, v5, {srd(SWS)}, s{sRLd} offen sc1 ; @rls")
        if i < 7: k(f"s_add_u32 s{sRLd}, s{sRLd}, s{sRLs}")
        if i < 5:
            for j in range(4): k(f"v_dot2c_f32_bf16 v7, v{b+j}, v8")
    k(f"""
    v_mov_b32 v3, v7
    v_permlane16_swap_b32 v7, v3
    v_add_f32 v7, v7, v3
    v_mov_b32 v3, v7
    v_permlane32_swap_b32 v7, v3
    v_add_f32 v7, v7, v3
    v_lshlrev_b32 v6, 2, v6
    s_mov_b64 exec, 0xffff
    buffer_store_dword v7, v6, {srd(SWS)}, s{sRLc} offen sc1 ; @rls
    s_mov_b64 exec, -1
    """)
    post(f"s_lshl_b32 s{sT0}, s2, 3\ns_add_u32 s{sT0}, s{sT0}, {FLGR}", f"v_mov_b32 v3, s{sTag+1}", False, "rls")
    stamp()
    lab = wave0_begin()
    k(f"""
    v_and_b32 v4, 15, v{vL}
    v_lshlrev_b32 v5, 3, v4
    s_lshl_b32 s{sT0}, s{sM}, 7
    v_add_u32 v5, s{sT0}, v5
    v_lshlrev_b32 v4, 7, v4
    s_lshl_b32 s{sT0}, s{sRB}, 3
    v_add_u32 v4, s{sT0}, v4
    v_bfe_u32 v6, v{vL}, 4, 1
    v_cmp_eq_u32 vcc, 0, v6
    v_cndmask_b32 v6, v4, v5, vcc
    """)
    spin_poll(f"buffer_load_dwordx2 v[2:3], v6, {srd(SWS)}, 0 offen offset:{FLGA} sc1",
              f"v_and_b32 v4, -16, v3\nv_cmp_ne_u32 vcc, s{sTag+1}, v4\nv_cmp_ne_u32 s[{sE}:{sE+1}], s{sTag}, v2\ns_or_b64 vcc, vcc, s[{sE}:{sE+1}]")
    k(f"""
    v_and_b32 v4, 15, v3
    v_cmp_ne_u32 vcc, s{sXcc}, v4
    s_and_b32 s{sT0}, vcc_lo, 0xffff0000
    s_cmp_eq_u32 s{sT0}, 0
    s_cselect_b32 s{sMode}, 1, 0
    """)
    if opt.get("force_slow"): k(f"s_mov_b32 s{sMode}, 0")
    wave0_end(lab)
    k("s_barrier")
    stamp()
    k(f"""
    v_lshlrev_b32 v2, 4, v0
    v_cmp_gt_u32 vcc, 240, v0
    v_mov_b32 v3, {OOB}
    v_cndmask_b32 v2, v3, v2, vcc
    s_lshl_b32 s{sT0}, s{sM}, 16
    s_add_u32 s{sT0}, s{sT0}, {PART}
    """)
    for p in range(16):
        k(f"buffer_load_dwordx4 {v(128+4*p,4)}, v2, {srd(SWS)}, s{sT0} offen sc1 ; @pp{p}")
        if p < 15: k(f"s_add_u32 s{sT0}, s{sT0}, 4096")
    k(f"""
    v_lshrrev_b32 v2, 5, v{vL}
    v_and_b32 v3, 1, v{vL}
    v_cmp_eq_u32 vcc, v2, v3
    v_mul_u32_u24 v2, 2560, v2
    v_bfe_u32 v4, v{vL}, 2, 2
    v_lshl_add_u32 v2, v4, 6, v2
    v_add_u32 v2, {L_KVT}, v2
    v_bfe_u32 v4, v{vL}, 4, 1
    v_bfe_u32 v5, v{vL}, 1, 1
    v_lshl_or_b32 v4, v4, 1, v5
    v_add_u32 v5, v4, v3
    v_lshl_add_u32 v5, v5, 3, v2
    v_add_u32 v6, 4, v4
    v_cmp_eq_u32 s[{sE}:{sE+1}], 0, v4
    v_lshlrev_b32 v3, 2, v3
    v_cndmask_b32 v3, 0, v3, s[{sE}:{sE+1}]
    v_sub_u32 v6, v6, v3
    v_lshl_add_u32 v6, v6, 3, v2
    v_mov_b32 v3, {L_Z2}
    v_cndmask_b32 v8, v3, v5, vcc
    v_cndmask_b32 v9, v3, v6, vcc
    v_mov_b32 v6, 0x3f80
    v_mov_b32 v7, 0x3f800000
    """)
    vS = 192
    for i in range(8): k(f"v_mov_b32 v{vS+i}, 0")
    for p in range(16):
        k(f"@waitvm pp{p}")
        for j in range(4):
            k(f"v_dot2c_f32_bf16 v{vS+2*j}, v{128+4*p+j}, v6\nv_dot2c_f32_bf16 v{vS+2*j+1}, v{128+4*p+j}, v7")
    for j in range(4): k(f"v_cvt_pk_bf16_f32 v{vS+8+j}, v{vS+2*j}, v{vS+2*j+1}")
    k(f"""
    ds_write_b64 v{vKW0}, {v(vS+8,2)}
    ds_write_b64 v{vKWd}, {v(vS+10,2)}
    s_waitcnt lgkmcnt(0)
    s_barrier
    """)
    for st in range(5):
        for tl in range(2):
            b = 128 + 8*st + 4*tl
            k(f"ds_read_b64_tr_b16 {v(b,2)}, v{8+tl} offset:{st*512} ; @oa{st}")
            k(f"ds_read_b64_tr_b16 {v(b+2,2)}, v{8+tl} offset:{st*512+256} ; @oa{st}")
    vO0, vO1 = 192, 208
    for st in range(5):
        k(f"@waitlg oa{st}")
        for tl, acc in enumerate((vO0, vO1)):
            k(f"v_mfma_f32_32x32x16_bf16 {v(acc,16)}, {v(128+8*st+4*tl,4)}, {v(vPQ+4*st,4)}, {'0' if st == 0 else v(acc,16)}")
    k(f"""
    v_bfe_u32 v2, v{vL}, 4, 1
    s_lshl_b32 s{sT0}, s{sRB}, 3
    s_lshl_b32 s{sT1}, s{sW}, 1
    s_add_u32 s{sT0}, s{sT0}, s{sT1}
    s_mul_i32 s{sT0}, s{sT0}, 20480
    s_mul_i32 s{sT1}, s{sM}, 1280
    s_add_u32 s{sT0}, s{sT0}, s{sT1}
    s_add_u32 s{sT0}, s{sT0}, {OFR}
    v_mul_u32_u24 v2, 20480, v2
    v_and_b32 v3, 15, v{vL}
    v_lshl_add_u32 v2, v3, 4, v2
    v_lshrrev_b32 v3, 5, v{vL}
    v_lshl_add_u32 v4, v3, 3, v2
    v_mul_u32_u24 v3, 768, v3
    v_add_u32 v2, v2, v3
    v_add_f32 v6, {fl(1e-6)}, v{vO1+4}
    v_rcp_f32 v6, v6
    """)
    for i, r in enumerate([vO0 + 2*x for x in range(8)] + [vO1, vO1 + 2]):
        k(f"v_pk_mul_f32 {v(r,2)}, {v(r,2)}, v[6:7] op_sel_hi:[1,0]")
        k(f"v_cvt_pk_bf16_f32 v{128+i}, v{r}, v{r+1}")
    k(f"""
    buffer_store_dwordx4 v[128:131], v2, {srd(SWS)}, s{sT0} offen sc1 ; @os
    buffer_store_dwordx4 v[132:135], v2, {srd(SWS)}, s{sT0} offen offset:256 sc1 ; @os
    buffer_store_dwordx2 v[136:137], v4, {srd(SWS)}, s{sT0} offen offset:512 sc1 ; @os
    """)
    def rowflag_off(base):
        return f"s_lshl_b32 s{sT0}, s{sRB}, 7\ns_lshl_b32 s{sT1}, s{sM}, 3\ns_add_u32 s{sT0}, s{sT0}, s{sT1}\ns_add_u32 s{sT0}, s{sT0}, {base}"
    post(rowflag_off(FLGB), f"v_mov_b32 v3, s{sTag+1}", True, "os")
    stamp()

    vXRS = 96
    vH = 112
    k(f"""
    s_lshl_b32 s{sT0}, s{sRB}, 7
    s_lshl_b32 s{sT1}, s{sTH}, 6
    s_add_u32 s{sT0}, s{sT0}, s{sT1}
    s_lshl_b32 s{sT1}, s{sW}, 4
    s_add_u32 s{sT0}, s{sT0}, s{sT1}
    s_mul_i32 s{sP2}, s{sT0}, 1280
    s_mul_i32 s{sT1}, s{sCT}, 160
    s_add_u32 s{sP2}, s{sP2}, s{sT1}
    v_and_b32 v2, 15, v{vL}
    v_mul_u32_u24 v2, 1280, v2
    v_lshrrev_b32 v3, 4, v{vL}
    v_lshl_add_u32 v2, v3, 3, v2
    """)
    for t in range(5):
        k(f"buffer_load_dwordx2 {v(vXRS+2*t,2)}, v2, {srd(SX)}, s{sP2} offen offset:{32*t} ; @xr")
    lab = wave0_begin()
    k(f"v_lshlrev_b32 v6, 5, v{vL}")
    spin_poll(f"buffer_load_dwordx4 v[128:131], v6, {srd(SWS)}, 0 offen offset:{FLGR} sc1\nbuffer_load_dwordx4 v[132:135], v6, {srd(SWS)}, 0 offen offset:{FLGR+16} sc1",
              "\n".join([f"v_cmp_ne_u64 {'vcc' if i == 0 else 's[%d:%d]' % (sE, sE+1)}, s[{sTag}:{sTag+1}], {v(128+2*i,2)}" + ("" if i == 0 else f"\ns_or_b64 vcc, vcc, s[{sE}:{sE+1}]") for i in range(4)]))
    wave0_end(lab)
    k("s_barrier")
    stamp()
    k(f"""
    v_lshlrev_b32 v2, 2, v0
    v_cmp_gt_u32 vcc, 192, v0
    v_mov_b32 v3, {OOB}
    v_cndmask_b32 v2, v3, v2, vcc
    s_mul_i32 s{sT0}, s{sM}, 768
    s_add_u32 s{sT0}, s{sT0}, {CSP}
    """)
    for sl in range(4):
        k(f"buffer_load_dword v{4+sl}, v2, {srd(SWS)}, s{sT0} offen sc1 ; @csp")
        if sl < 3: k(f"s_add_u32 s{sT0}, s{sT0}, 12288")
    vW3D = 10
    sW3, sW3L = sXb, sXL
    k(f"""
    v_lshlrev_b32 v{vW3D}, 4, v{vL}
    s_mul_i32 s{sW3}, s{sM}, {240*1024}
    s_mul_i32 s{sT0}, s{sW}, 3072
    s_add_u32 s{sW3}, s{sW3}, s{sT0}
    s_add_u32 s{sW3}, s{sW3}, {WGU}
    s_add_u32 s{sW3L}, s{sT0}, {L_W3}
    """)
    def w3_dma(q):
        slot = q % 12
        k(f"s_add_u32 m0, s{sW3L}, {slot*12288}")
        for j in range(3):
            k(f"buffer_load_dwordx4 v{vW3D}, {srd(SWS)}, s{sW3} offen offset:{j*1024} sc1 lds ; @w3_{q}")
        k(f"s_add_u32 s{sW3}, s{sW3}, 12288")
    for q in range(4): w3_dma(q)
    k(f"""
    @waitvm csp
    v_add_f32 v4, v4, v5
    v_add_f32 v6, v6, v7
    v_add_f32 v4, v4, v6
    v_lshlrev_b32 v2, 2, v0
    ds_write_b32 v2, v4 offset:{L_CS}
    """)
    def rowflag_wait(base):
        lab = wave0_begin()
        k(f"v_and_b32 v6, 15, v{vL}\nv_lshlrev_b32 v6, 3, v6\ns_lshl_b32 s{sT0}, s{sRB}, 7\ns_add_u32 s{sT0}, s{sT0}, {base}")
        spin_poll(f"buffer_load_dwordx2 v[2:3], v6, {srd(SWS)}, s{sT0} offen sc1", f"v_cmp_ne_u64 vcc, s[{sTag}:{sTag+1}], v[2:3]")
        wave0_end(lab)
    vP2A, vP2B = 11, 12
    k(f"""
    v_lshrrev_b32 v2, 5, v{vL}
    v_bfe_u32 v3, v{vL}, 4, 1
    v_lshlrev_b32 v2, 4, v2
    v_lshl_add_u32 v2, v3, 2, v2
    v_bfe_u32 v3, v{vL}, 2, 2
    v_add_u32 v2, v2, v3
    v_mul_u32_u24 v2, 160, v2
    v_and_b32 v3, 3, v{vL}
    v_lshl_add_u32 v2, v3, 3, v2
    v_add_u32 v{vP2A}, {L_WO}, v2
    v_add_u32 v{vP2B}, {L_WO + 10*5120}, v2
    s_lshl_b32 s{sT2}, s{sRB}, 3
    s_lshl_b32 s{sT3}, s{sTH}, 2
    s_add_u32 s{sT2}, s{sT2}, s{sT3}
    s_add_u32 s{sT2}, s{sT2}, s{sW}
    s_mul_i32 s{sP0}, s{sT2}, 20480
    s_add_u32 s{sP0}, s{sP0}, {OFR}
    """)
    rowflag_wait(FLGB)
    k("@waitvm wo\ns_waitcnt lgkmcnt(0)\ns_barrier")
    stamp()
    vOF, aP2 = 128, 208
    for st in range(20):
        k(f"buffer_load_dwordx4 {v(vOF+4*st,4)}, v{vW3D}, {srd(SWS)}, s{sP0} offen offset:{(st%4)*1024} sc1 ; @of{st}")
        if st % 4 == 3 and st < 19: k(f"s_add_u32 s{sP0}, s{sP0}, 4096")
    def p2r(st):
        buf = st & 1
        ad = vP2A if st < 10 else vP2B
        for t in range(5):
            b = 48 + 20*buf + 4*t
            o = (st % 10)*5120 + 32*t
            k(f"ds_read_b64_tr_b16 {v(b,2)}, v{ad} offset:{o} ; @w{st}\nds_read_b64_tr_b16 {v(b+2,2)}, v{ad} offset:{o+1280} ; @w{st}")
    p2r(0)
    for st in range(20):
        m0_ = k.mark()
        if st < 19: p2r(st + 1)
        rd = k.cut(m0_)
        for l in rd[:4]: k(l)
        k(f"@waitboth of{st} w{st}")
        for t in range(5):
            b = 48 + 20*(st & 1) + 4*t
            k(f"v_mfma_f32_16x16x32_bf16 {v(aP2+4*t,4)}, {v(b,4)}, {v(vOF+4*st,4)}, {'0' if st == 0 else v(aP2+4*t,4)}")
            for l in rd[4+ (6*t)//5 : 4 + (6*(t+1))//5]: k(l)
    k("s_barrier")
    for q in range(4, 12): w3_dma(q)
    stamp()
    vU = 128
    k("@waitvm xr")
    for t in range(5):
        for j in range(2):
            k(f"v_lshlrev_b32 v{vU+4*t+2*j}, 16, v{vXRS+2*t+j}\nv_and_b32 v{vU+4*t+2*j+1}, 0xffff0000, v{vXRS+2*t+j}")
    for i in range(0, 20, 2):
        k(f"v_pk_add_f32 {v(vU+i,2)}, {v(vU+i,2)}, {v(aP2+i,2)}")
        k(f"v_cvt_pk_bf16_f32 v{vH+i//2}, v{vU+i}, v{vU+i+1}")
    for i in range(10):
        k(f"v_lshlrev_b32 v{vU+2*i}, 16, v{vH+i}\nv_and_b32 v{vU+2*i+1}, 0xffff0000, v{vH+i}")
    vHS = 148
    for i in range(10): k(f"v_mov_b32 v{vHS+i}, v{vH+i}")
    for pr in range(2):
        for j in range(2):
            k(f"v_permlane16_swap_b32 v{vHS+4*pr+j}, v{vHS+4*pr+2+j}")
    def red4(r, t):
        k(f"""
        v_mov_b32 v{t}, v{r}
        v_permlane16_swap_b32 v{r}, v{t}
        v_add_f32 v{r}, v{r}, v{t}
        v_mov_b32 v{t}, v{r}
        v_permlane32_swap_b32 v{r}, v{t}
        v_add_f32 v{r}, v{r}, v{t}
        """)
    k(f"""
    s_lshl_b32 s{sT0}, s{sRB}, 2
    s_lshl_b32 s{sT1}, s{sTH}, 1
    s_add_u32 s{sT0}, s{sT0}, s{sT1}
    s_lshr_b32 s{sT1}, s{sW}, 1
    s_add_u32 s{sT0}, s{sT0}, s{sT1}
    s_mul_i32 s{sT0}, s{sT0}, 40960
    s_mul_i32 s{sT1}, s{sCT}, 5120
    s_add_u32 s{sT0}, s{sT0}, s{sT1}
    s_and_b32 s{sT1}, s{sW}, 1
    s_lshl_b32 s{sT1}, s{sT1}, 8
    s_add_u32 s{sT0}, s{sT0}, s{sT1}
    s_add_u32 s{sT0}, s{sT0}, {HFR}
    s_add_u32 s{sT1}, s{sT0}, 4096
    v_and_b32 v2, 15, v{vL}
    v_lshlrev_b32 v2, 4, v2
    v_lshrrev_b32 v3, 5, v{vL}
    v_lshl_add_u32 v2, v3, 9, v2
    v_bfe_u32 v3, v{vL}, 4, 1
    v_lshl_add_u32 v4, v3, 10, v2
    v_lshl_add_u32 v5, v3, 3, v2
    buffer_store_dwordx4 {v(vHS,4)}, v4, {srd(SWS)}, s{sT0} offen sc1 ; @hs
    buffer_store_dwordx4 {v(vHS+4,4)}, v4, {srd(SWS)}, s{sT0} offen offset:2048 sc1 ; @hs
    buffer_store_dwordx2 {v(vHS+8,2)}, v5, {srd(SWS)}, s{sT1} offen sc1 ; @hs
    """)
    k(f"v_pk_add_f32 v[2:3], {v(vU,2)}, {v(vU+2,2)}")
    for i in range(4, 20, 2): k(f"v_pk_add_f32 v[2:3], v[2:3], {v(vU+i,2)}")
    k("v_add_f32 v2, v2, v3")
    red4(2, 3)
    k(f"v_mul_f32 v4, {fl(-1.0/80)}, v2")
    for i in range(0, 20, 2): k(f"v_pk_add_f32 {v(vU+i,2)}, {v(vU+i,2)}, v[4:5] op_sel_hi:[1,0]")
    k(f"v_pk_mul_f32 v[6:7], {v(vU,2)}, {v(vU,2)}")
    for i in range(2, 20, 2): k(f"v_pk_fma_f32 v[6:7], {v(vU+i,2)}, {v(vU+i,2)}, v[6:7]")
    k("v_add_f32 v3, v6, v7")
    red4(3, 4)
    k(f"""
    s_lshl_b32 s{sT0}, s{sRB}, 3
    s_add_u32 s{sT0}, s{sT0}, s{sCT}
    s_lshl_b32 s{sT0}, s{sT0}, 10
    s_lshl_b32 s{sT1}, s{sTH}, 9
    s_add_u32 s{sT0}, s{sT0}, s{sT1}
    s_lshl_b32 s{sT1}, s{sW}, 7
    s_add_u32 s{sT0}, s{sT0}, s{sT1}
    s_add_u32 s{sT0}, s{sT0}, {STAT}
    v_lshlrev_b32 v4, 3, v{vL}
    s_mov_b64 exec, 0xffff
    buffer_store_dwordx2 v[2:3], v4, {srd(SWS)}, s{sT0} offen sc1 ; @hs
    s_mov_b64 exec, -1
    """)
    post(rowflag_off(FLGC), f"v_mov_b32 v3, s{sTag+1}", True, "hs")
    stamp()
    k(f"""
    s_lshl_b32 s{sT2}, s{sRB}, 2
    s_add_u32 s{sT2}, s{sT2}, s{sW}
    s_mul_i32 s{sP0}, s{sT2}, 40960
    s_add_u32 s{sP0}, s{sP0}, {HFR}
    s_lshl_b32 s{sP1}, s{sRB}, 13
    s_lshl_b32 s{sT2}, s{sW}, 8
    s_add_u32 s{sP1}, s{sP1}, s{sT2}
    s_add_u32 s{sP1}, s{sP1}, {STAT}
    v_and_b32 v8, 31, v{vL}
    v_lshlrev_b32 v8, 3, v8
    """)
    rowflag_wait(FLGC)
    k("s_barrier")
    stamp()
    vSTT = 224
    for n in range(40):
        k(f"buffer_load_dwordx4 {a(4*n,4)}, v{vW3D}, {srd(SWS)}, s{sP0} offen offset:{(n%4)*1024} sc1 ; @hf{n}")
        if n % 4 == 3 and n < 39: k(f"s_add_u32 s{sP0}, s{sP0}, 4096")
        if n == 3:
            for c in range(8):
                k(f"buffer_load_dwordx2 {v(vSTT+2*c,2)}, v8, {srd(SWS)}, s{sP1} offen offset:{(c%4)*1024} sc1 ; @stt")
                if c == 3: k(f"s_add_u32 s{sP1}, s{sP1}, 4096")
    vW3R = [12, 13, 14]
    for i in range(3): k(f"v_add_u32 v{vW3R[i]}, {L_W3 + i*49152}, v{vW3D}")
    aP3 = 128
    def p3r(n):
        q = n // 4; slot = q % 12; buf = n & 1
        for tt in range(3):
            b = 48 + 12*buf + 4*tt
            k(f"ds_read_b128 {v(b,4)}, v{vW3R[slot//4]} offset:{(slot%4)*12288 + ((n%4)*3 + tt)*1024} ; @t{n}")
    def p3m(n):
        p_, s16 = divmod(n, 40); buf = n & 1
        for tt in range(3):
            acc = aP3 + 16*(3*p_ + tt); b = 48 + 12*buf + 4*tt
            k(f"v_mfma_f32_32x32x16_bf16 {v(acc,16)}, {v(b,4)}, {a(4*s16,4)}, {'0' if s16 == 0 else v(acc,16)}")
    sWD = sK
    k(f"""
    s_mul_i32 s{sWD}, s{sCT}, {240*1024}
    s_mul_i32 s{sT0}, s{sW}, {60*1024}
    s_add_u32 s{sWD}, s{sWD}, s{sT0}
    s_add_u32 s{sWD}, s{sWD}, {WD}
    """)
    def wdreg(f): return 160 + 4*f if f < 24 else 4*(f - 24)
    def wd_load(f):
        k(f"buffer_load_dwordx4 {a(wdreg(f),4)}, v{vW3D}, {srd(SWS)}, s{sWD} offen offset:{(f%4)*1024} sc1 ; @wd{f}")
        if f % 4 == 3: k(f"s_add_u32 s{sWD}, s{sWD}, 4096")
    vAS = 15
    k(f"""
    s_lshl_b32 s{sT0}, s{sRB}, 3
    s_lshl_b32 s{sT1}, s{sW}, 1
    s_add_u32 s{sT0}, s{sT0}, s{sT1}
    s_mul_i32 s{sP3}, s{sT0}, 49152
    s_mul_i32 s{sT1}, s{sM}, 3072
    s_add_u32 s{sP3}, s{sP3}, s{sT1}
    s_add_u32 s{sP3}, s{sP3}, {ACT}
    v_bfe_u32 v2, v{vL}, 4, 1
    v_mul_u32_u24 v2, 49152, v2
    v_and_b32 v3, 15, v{vL}
    v_lshl_add_u32 v2, v3, 4, v2
    v_lshrrev_b32 v3, 5, v{vL}
    v_lshl_add_u32 v{vAS}, v3, 8, v2
    v_lshlrev_b32 v9, 4, v3
    """)
    vM3, vR3 = 104, 106
    C0 = -2.0 * 0.7978845608028654 * LOG2E
    C1 = C0 * 0.044715
    sC0, sC1 = sKq, sWb
    k(f"s_mov_b32 s{sC0}, {fl(C0)}\ns_mov_b32 s{sC1}, {fl(C1)}")
    def stats_code():
        k("@waitvm stt")
        k(f"v_add_f32 v2, v{vSTT}, v{vSTT+2}")
        for c in range(2, 8): k(f"v_add_f32 v2, v2, v{vSTT+2*c}")
        k(f"v_mul_f32 v{vM3}, {fl(-1.0/640)}, v2")
        k(f"v_add_f32 v3, v{vSTT+1}, v{vSTT+3}")
        for c in range(2, 8): k(f"v_add_f32 v3, v3, v{vSTT+2*c+1}")
        k(f"v_mov_b32 v4, 0\nv_mov_b32 v5, {fl(1.0/80)}")
        for c in range(8):
            k(f"v_fma_f32 v2, v{vSTT+2*c}, v5, v{vM3}\nv_fmac_f32 v4, v2, v2")
        k(f"""
        v_mov_b32 v5, {fl(80.0)}
        v_fmac_f32 v3, v4, v5
        v_mov_b32 v5, {fl(1e-5)}
        v_fmac_f32 v5, {fl(1.0/640)}, v3
        v_rsq_f32 v{vR3}, v5
        """)
    def gelu_tile(wl, packed, tmp):
        acc = aP3 + 16*wl
        cs = tmp; T = tmp + 16; O = tmp + 24
        for j in range(4): k(f"ds_read_b128 {v(cs+4*j,4)}, v9 offset:{L_CS + wl*128 + j*32} ; @c{wl}")
        k(f"@waitlg c{wl}")
        if packed:
            for i in range(0, 16, 2): k(f"v_pk_fma_f32 {v(acc+i,2)}, {v(cs+i,2)}, {v(vM3,2)}, {v(acc+i,2)} op_sel_hi:[1,0,1]")
            for i in range(0, 16, 2): k(f"v_pk_mul_f32 {v(acc+i,2)}, {v(acc+i,2)}, {v(vR3,2)} op_sel_hi:[1,0]")
            for i in range(0, 8, 2): k(f"v_pk_mul_f32 {v(T+i,2)}, {v(acc+i,2)}, {v(acc+i,2)}")
            for i in range(0, 8, 2): k(f"v_pk_fma_f32 {v(T+i,2)}, {v(T+i,2)}, v[6:7], v[6:7] op_sel:[0,1,0] op_sel_hi:[1,1,0]")
            for i in range(0, 8, 2): k(f"v_pk_mul_f32 {v(T+i,2)}, {v(T+i,2)}, {v(acc+i,2)}")
            for i in range(8): k(f"v_exp_f32 v{T+i}, v{T+i}")
            for i in range(0, 8, 2): k(f"v_pk_mul_f32 {v(acc+i,2)}, {v(acc+i,2)}, {v(acc+8+i,2)}")
            for i in range(0, 8, 2): k(f"v_pk_add_f32 {v(T+i,2)}, {v(T+i,2)}, 1.0 op_sel_hi:[1,0]")
            for i in range(8): k(f"v_rcp_f32 v{T+i}, v{T+i}")
            for i in range(0, 8, 2): k(f"v_pk_mul_f32 {v(acc+i,2)}, {v(acc+i,2)}, {v(T+i,2)}")
        else:
            for i in range(16): k(f"v_fmac_f32 v{acc+i}, v{cs+i}, v{vM3}")
            for i in range(16): k(f"v_mul_f32 v{acc+i}, v{acc+i}, v{vR3}")
            for i in range(8): k(f"v_mul_f32 v{T+i}, v{acc+i}, v{acc+i}")
            for i in range(8): k(f"v_fma_f32 v{T+i}, v{T+i}, v7, v6")
            for i in range(8): k(f"v_mul_f32 v{T+i}, v{T+i}, v{acc+i}")
            for i in range(8): k(f"v_exp_f32 v{T+i}, v{T+i}\nv_mul_f32 v{acc+i}, v{acc+i}, v{acc+8+i}")
            for i in range(8): k(f"v_add_f32 v{T+i}, 1.0, v{T+i}")
            for i in range(8): k(f"v_rcp_f32 v{T+i}, v{T+i}")
            for i in range(8): k(f"v_mul_f32 v{acc+i}, v{acc+i}, v{T+i}")
        for i in range(4): k(f"v_cvt_pk_bf16_f32 v{O+i}, v{acc+2*i}, v{acc+2*i+1}")
        k(f"buffer_store_dwordx4 {v(O,4)}, v{vAS}, {srd(SWS)}, s{sP3} offen offset:{wl*512} sc1 ; @as")
    k("@waitvm w3_0\ns_barrier")
    p3r(0)
    mstart = k.mark()
    wdn = 0
    for n in range(80):
        q, js = divmod(n, 4)
        if n == 40:
            main1 = k.cut(mstart)
            mm = k.mark(); stats_code(); k(f"v_mov_b32 v6, s{sC0}\nv_mov_b32 v7, s{sC1}"); fill = k.cut(mm)
            half = [i for i, l in enumerate(main1) if l.startswith('v_mfma')][60]
            for l in interleave(main1, fill, start=half): k(l)
            mstart = k.mark()
        if n == 79:
            k(f"@waitlg t{n}")
        elif js < 3:
            p3r(n + 1)
            k(f"@waitboth hf{n%40} t{n}" if n < 40 else f"@waitlg t{n}")
        else:
            if n < 40: k(f"@waitvm hf{n}")
            k(f"@waitboth w3_{q+1} t{n}\ns_barrier")
            if q + 12 < 20: w3_dma(q + 12)
            if q >= 8:
                for _ in range(2):
                    if wdn < 24: wd_load(wdn); wdn += 1
            p3r(n + 1)
        p3m(n)
    main2 = k.cut(mstart)
    mm = k.mark()
    for wl in range(3): gelu_tile(wl, False, 72 if wl % 2 == 0 else 224)
    fill = k.cut(mm)
    for l in interleave(main2, fill): k(l)
    stamp()
    while wdn < 60: wd_load(wdn); wdn += 1
    for wl in range(3, 6): gelu_tile(wl, True, 72 if wl % 2 == 0 else 224)
    post(rowflag_off(FLGD), f"v_mov_b32 v3, s{sTag+1}", True, "as")
    stamp()
    vAF = 16
    k(f"""
    s_lshl_b32 s{sT0}, s{sRB}, 3
    s_lshl_b32 s{sT1}, s{sTH}, 2
    s_add_u32 s{sT0}, s{sT0}, s{sT1}
    s_mul_i32 s{sP0}, s{sT0}, 49152
    s_mul_i32 s{sT1}, s{sW}, 12288
    s_add_u32 s{sP0}, s{sP0}, s{sT1}
    s_add_u32 s{sP0}, s{sP0}, {ACT}
    """)
    vRW = 20
    for j in range(4):
        k(f"""
        s_add_u32 s{sT0}, s{sW}, {j}
        s_and_b32 s{sT0}, s{sT0}, 3
        s_mul_i32 s{sT1}, s{sT0}, 49152
        v_add_u32 v{vAF+j}, s{sT1}, v{vW3D}
        s_mul_i32 s{sT1}, s{sT0}, 15360
        s_add_u32 s{sT1}, s{sT1}, {L_RED + max(j-1,0)*5120}
        v_add_u32 v{vRW + (j-1 if j else 3)}, s{sT1}, v{vW3D}
        """)
    rowflag_wait(FLGD)
    k("s_barrier")
    stamp()
    aP4 = 128
    DEPTH = 6
    bufs = [24 + 16*i for i in range(5)] + [208 + 16*i for i in range(3)]
    bufs = bufs[:DEPTH + 2]
    NB = len(bufs)
    def af_load(sl):
        for j in range(4):
            k(f"buffer_load_dwordx4 {v(bufs[sl % NB]+4*j,4)}, v{vAF+j}, {srd(SWS)}, s{sP0} offen offset:{(sl%4)*1024} sc1 ; @af{sl}")
        if sl % 4 == 3 and sl < 11: k(f"s_add_u32 s{sP0}, s{sP0}, 4096")
    for sl in range(NB): af_load(sl)
    for sl in range(12):
        k(f"@waitvm af{sl}")
        for j in range(4):
            for t in range(5):
                acc = aP4 + 20*j + 4*t
                k(f"v_mfma_f32_16x16x32_bf16 {v(acc,4)}, {a(wdreg(5*sl+t),4)}, {v(bufs[sl % NB]+4*j,4)}, {'0' if sl == 0 else v(acc,4)}")
        if sl + NB < 12: af_load(sl + NB)
    stamp()
    for j in range(1, 4):
        for t in range(5):
            k(f"ds_write_b128 v{vRW+j-1}, {v(aP4+20*j+4*t,4)} offset:{t*1024}")
    vHU = 24
    for i in range(10):
        k(f"v_lshlrev_b32 v{vHU+2*i}, 16, v{vH+i}\nv_and_b32 v{vHU+2*i+1}, 0xffff0000, v{vH+i}")
    for i in range(0, 20, 2): k(f"v_pk_add_f32 {v(aP4+i,2)}, {v(aP4+i,2)}, {v(vHU+i,2)}")
    k(f"""
    v_and_b32 v2, 15, v{vL}
    v_mul_u32_u24 v2, 1280, v2
    v_lshrrev_b32 v3, 4, v{vL}
    v_lshl_add_u32 v5, v3, 3, v2
    v_lshrrev_b32 v3, 5, v{vL}
    v_lshl_add_u32 v4, v3, 4, v2
    v_bfe_u32 v3, v{vL}, 4, 1
    v_lshl_add_u32 v4, v3, 5, v4
    s_waitcnt lgkmcnt(0)
    s_barrier
    """)
    vRR = 148
    for j in range(3):
        for t in range(5):
            k(f"ds_read_b128 {v(vRR+20*j+4*t,4)}, v{vRW+3} offset:{j*5120+t*1024} ; @rd{j}")
    for j in range(3):
        k(f"@waitlg rd{j}")
        for i in range(0, 20, 2): k(f"v_pk_add_f32 {v(aP4+i,2)}, {v(aP4+i,2)}, {v(vRR+20*j+i,2)}")
    for i in range(10): k(f"v_cvt_pk_bf16_f32 v{vHU+i}, v{aP4+2*i}, v{aP4+2*i+1}")
    for pr in range(2):
        for j in range(2):
            k(f"v_permlane16_swap_b32 v{vHU+4*pr+j}, v{vHU+4*pr+2+j}")
    k(f"""
    buffer_store_dwordx4 {v(vHU,4)}, v4, {srd(SOUT)}, s{sP2} offen
    buffer_store_dwordx4 {v(vHU+4,4)}, v4, {srd(SOUT)}, s{sP2} offen offset:64
    buffer_store_dwordx2 {v(vHU+8,2)}, v5, {srd(SOUT)}, s{sP2} offen offset:128
    """)
    if stamps:
        k("s_waitcnt vmcnt(0)")
        stamp()
        lab = wave0_begin()
        k(f"s_lshl_b32 s{sT0}, s2, 7\ns_add_u32 s{sT0}, s{sT0}, {TSTAMP}\nv_mov_b32 v6, 0\ns_mov_b64 exec, 1")
        for i in range(nst[0]):
            k(f"v_mov_b32 v2, s{sST+i}\nbuffer_store_dword v2, v6, {srd(SWS)}, s{sT0} offen offset:{4*i}")
        k(f"v_mov_b32 v2, s{sMode}\nbuffer_store_dword v2, v6, {srd(SWS)}, s{sT0} offen offset:124")
        wave0_end(lab)
    k("L_end:\ns_endpgm")
    L = resolve_waits(k.L)
    L, nn = insert_nops(L)
    hdr = open("cdna_kernels/" + NAME[:-7] + ".s.ref").read().split("; Override launch")[0]
    out = hdr + f"; @launch kernel={NAME} grid=(256,1,1) block=(256,1,1) lds={LDS_SIZE}\n"
    out += f'.amdgcn_target "amdgcn-amd-amdhsa--gfx950"\n.text\n.globl {NAME}\n.p2align 8\n.type {NAME},@function\n{NAME}:\n'
    out += "\n".join(("" if is_label(l) else "    ") + l for l in L) + "\n"
    out += f""".section .rodata,"a"
.p2align 6
.amdhsa_kernel {NAME}
  .amdhsa_next_free_vgpr 512
  .amdhsa_next_free_sgpr 102
  .amdhsa_accum_offset 256
  .amdhsa_group_segment_fixed_size 0
  .amdhsa_kernarg_size 88
  .amdhsa_user_sgpr_count 2
  .amdhsa_user_sgpr_kernarg_segment_ptr 1
  .amdhsa_system_sgpr_workgroup_id_x 1
  .amdhsa_float_denorm_mode_32 3
.end_amdhsa_kernel
"""
    return out, nst[0], nn

if __name__ == "__main__":
    import argparse
    ap = argparse.ArgumentParser()
    ap.add_argument("-o", default="k.s"); ap.add_argument("--stamps", action="store_true")
    ap.add_argument("--opt", default="")
    A = ap.parse_args()
    opt = dict((kv.split("=") + ["1"])[:2] for kv in A.opt.split(",") if kv)
    txt, ns, nn = build(stamps=A.stamps, opt=opt)
    open(A.o, "w").write(txt)
    print(f"wrote {A.o}: {len(txt)} bytes, stamps={ns}, nops={nn}")
```
